```python
import torch

def _softmax(x, axis=-1):
    return torch.softmax(x, dim=axis)
def _gelu(x):
    return torch.nn.functional.gelu(x, approximate="tanh")
def _silu(x):
    return torch.nn.functional.silu(x)
def _sigmoid(x):
    return torch.sigmoid(x)
def _layernorm(x, axis=-1, eps=1e-5):
    m = x.mean(dim=axis, keepdim=True)
    v = x.var(dim=axis, keepdim=True, unbiased=False)
    return (x - m) / torch.sqrt(v + eps)
def _scatter_add(tgt, idx, src, axis=0):
    return tgt.clone().index_add_(axis, idx, src)
def _segment_sum(src, seg, n):
    out = torch.zeros((n,) + src.shape[1:], dtype=src.dtype)
    return out.index_add_(0, seg, src)
def _pad(x, pw):
    flat = tuple(v for pair in reversed(pw) for v in pair)
    return torch.nn.functional.pad(x, flat)

kernel_name = 'standalone__mha_block_cached__near_ridge'

def setup_inputs():

    _w = (lambda a: (lambda t: t.to(torch.bfloat16) if t.is_floating_point() else t)(torch.as_tensor(a)))
    B, Sq, D = 16, 32, 640
    H, Sk, Dh = 32, 32, 192
    return {
        "x": _w((lambda *s: torch.randn(*s, dtype=torch.bfloat16) * 0.8)(B, Sq, D)),
        "k_cache": _w((lambda *s: torch.randn(*s, dtype=torch.bfloat16) * 0.8)(B, H, Sk, Dh)),
        "v_cache": _w((lambda *s: torch.randn(*s, dtype=torch.bfloat16) * 0.05)(B, H, Sk, Dh)),
        "wq": _w((lambda *s: torch.randn(*s, dtype=torch.bfloat16) * 0.8)(D, H * Dh) * (D ** -0.5)),
        "wo": _w((lambda *s: torch.randn(*s, dtype=torch.bfloat16) * 0.05)(H * Dh, D) * ((H * Dh) ** -0.5)),
    }

def reference(x, k_cache, v_cache, wq, wo):
    B, Sq, D = x.shape
    H, Dh = 32, 192
    q = (lambda x, *d: x.permute(*d))((x @ wq).reshape(B, Sq, H, Dh), 0, 2, 1, 3)
    scores = torch.einsum("bhqd,bhkd->bhqk", q, k_cache) * (Dh ** -0.5)
    p = _softmax(scores, axis=-1)
    o = torch.einsum("bhqk,bhkd->bhqd", p, v_cache)
    return (lambda x, *d: x.permute(*d))(o, 0, 2, 1, 3).reshape(B, Sq, H * Dh) @ wo
```

```python
import sys
from asmlib import *

WSB = 268435456
NREC = 256*8*16
P_OFF = 0
PART_OFF = 1 << 20
SH_BASE = 36864
CNT = 77824
BR = 81920
C2, C3, C6, C5 = 0, 4, 8, 16
SPIN = 1 << 22

class VM:
    def __init__(self): self.n = 0; self.last = {}
    def issue(self, tag, cnt=1):
        self.n += cnt; self.last[tag] = self.n
    def wait(self, tag): return self.n - self.last[tag]

MF = "v_mfma_f32_32x32x16_bf16"
def vr(b, n): return f"v[{b}:{b+n-1}]"

def gen_main(diag=False, opt=None):
    opt = opt or {}
    a = Asm()
    ts_idx = [0]
    def stamp(i):
        if diag:
            a(f"s_memrealtime s[{70+2*i}:{71+2*i}]")
    lbl = [0]
    def poll_lds(vaddr, off, target, vt, sleep=1):
        lbl[0] += 1; L = lbl[0]
        a(f"""s_mov_b32 s61, {SPIN}
        .Lp{L}:
        ds_read_b32 v{vt}, v{vaddr} offset:{off}
        s_waitcnt lgkmcnt(0)
        v_readfirstlane_b32 s60, v{vt}
        s_cmp_ge_u32 s60, {target}
        s_cbranch_scc1 .Lq{L}
        s_sub_u32 s61, s61, 1
        s_cbranch_scc0 .Lp{L}
        .Lq{L}:""")
    def lds_arrive(vaddr, off, vone):
        a(f"""s_mov_b64 exec, 1
        ds_add_u32 v{vaddr}, v{vone} offset:{off}
        s_mov_b64 exec, -1""")
    def mod10(s):
        a(f"""s_sub_u32 s62, s{s}, 10
        s_cmp_ge_u32 s{s}, 10
        s_cselect_b32 s{s}, s62, s{s}""")

    a(f"""
    s_cmp_ge_u32 s2, 256
    s_cbranch_scc1 .Lend
    s_load_dwordx16 s[4:19], s[0:1], 0
    """)
    stamp(0)
    a(f"""
    v_readfirstlane_b32 s23, v0
    v_and_b32 v1, 63, v0                ; lane
    s_and_b32 s20, s2, 7
    s_lshr_b32 s21, s2, 5
    s_lshr_b32 s22, s2, 3
    s_and_b32 s22, s22, 3
    s_lshr_b32 s23, s23, 6              ; wave
    v_and_b32 v2, 31, v1
    v_lshrrev_b32 v3, 5, v1
    v_bfe_u32 v4, v1, 1, 3
    v_xor_b32 v4, v4, v3
    v_lshlrev_b32 v4, 4, v4
    v_lshl_add_u32 v4, v2, 7, v4        ; v4 = lanepart[0]
    v_lshrrev_b32 v5, 3, v1
    v_and_b32 v6, 7, v1
    v_lshrrev_b32 v7, 4, v1
    v_xor_b32 v6, v6, v7
    v_lshlrev_b32 v6, 4, v6
    s_cmp_ge_u32 s23, 4
    s_cbranch_scc1 .Lbwave
    """)
    vRd, vWq, vX, vCnt, vOne = 8, 12, 240, 244, 245
    KF, WF, XF, MA, SA = 16, 112, 144, 176, 208
    vm = VM()
    a(f"""
    s_setprio {opt.get('prioA', 2)}
    s_lshl_b32 s40, s20, 2
    s_add_u32 s40, s40, s22             ; head
    ; rho
    s_lshl_b32 s41, s21, 1
    s_cmp_ge_u32 s21, 5
    s_addc_u32 s41, s41, 0
    """)
    if opt.get('norot'): a("s_mov_b32 s41, 0")
    mod10(41)
    a("s_add_u32 s42, s41, 1"); mod10(42)
    a("s_add_u32 s43, s41, s23\ns_add_u32 s44, s43, 6\ns_add_u32 s43, s43, 2"); mod10(43); mod10(44)
    a(f"""
    s_cmp_ge_u32 s23, 2
    s_cselect_b32 s45, s42, s41
    s_lshl_b32 s45, s45, 1
    s_and_b32 s46, s23, 1
    s_add_u32 s45, s45, s46             ; u0
    s_mul_i32 s50, s45, 393216          ; su0
    s_mul_i32 s51, s43, 786432          ; su1
    s_add_u32 s52, s51, 393216          ; su2
    s_mul_i32 s53, s44, 786432          ; su3
    s_add_u32 s54, s53, 393216          ; su4
    s_lshl_b32 s41, s41, 7              ; L0*128
    s_lshl_b32 s42, s42, 7
    s_lshl_b32 s43, s43, 7              ; La*128
    s_lshl_b32 s44, s44, 7
    s_lshl_b32 s47, s46, 6              ; 64*(w&1)
    s_lshl_b32 s48, s23, 3              ; 8w
    v_add_u32 v7, s48, v5
    v_xor_b32 v2, s47, v6
    v_mul_u32_u24 v246, 384, v7
    v_add_u32 v246, v246, v2            ; K voffset
    v_mul_u32_u24 v247, 1280, v7
    v_add_u32 v247, v247, v2
    v_and_b32 v7, 4, v5
    v_add_u32 v7, v7, v5                ; r + 4*(r>>2)*1 -> (r&3) + 8*(r>>2)
    v_mul_u32_u24 v7, 12288, v7
    v_add_u32 v{vWq}, v7, v6
    v_xor_b32 v{vWq+1}, 64, v{vWq}
    v_add_u32 v{vWq+2}, {16*12288-2048}, v{vWq}
    v_add_u32 v{vWq+3}, {20*12288-3072}, v{vWq+1}
    v_add_u32 v{vWq+1}, {4*12288-1024}, v{vWq+1}
    s_mul_i32 s55, s40, 384
    s_lshl_b32 s56, s21, 6
    s_add_u32 s56, s56, s40
    s_mul_i32 s56, s56, 12288
    s_mul_i32 s57, s21, 81920
    s_lshl_b32 s58, s23, 10             ; w*1024
    s_add_u32 s58, s58, {SH_BASE}
    s_lshl_b32 s59, s23, 12
    s_waitcnt lgkmcnt(0)
    s_add_u32 s32, s6, s56
    s_addc_u32 s33, s7, 0
    s_mov_b32 s34, {393216+12288}
    s_mov_b32 s35, 0x20000
    s_add_u32 s28, s4, s57
    s_addc_u32 s29, s5, 0
    s_mov_b32 s30, 81920
    s_mov_b32 s31, 0x20000
    s_add_u32 s24, s10, s55
    s_addc_u32 s25, s11, 0
    s_mov_b32 s26, {639*12288+384}
    s_mov_b32 s27, 0x20000
    """)
    stream = []
    for u in range(5):
        for c in range(3):
            if u in (1, 3) and c == 2:
                stream += [('X', u, 0), ('X', u, 1)]
            stream.append(('W', u, c))
    def a_dma_setup(i):
        t, u, c = stream[i]
        a(f"s_add_u32 m0, s59, {(i % 4)*16384}")
        if t == 'W':
            a(f"s_add_u32 s63, s{50+u}, {c*128}")
        else:
            a(f"s_add_u32 s63, s{43 if u == 1 else 44}, {c*40960}")
    def a_dma_piece(i, p):
        t, u, c = stream[i]
        if t == 'W':
            a(f"buffer_load_dwordx4 v{vWq+p}, s[24:27], s63 offen offset:{1024*p} lds")
        else:
            a(f"buffer_load_dwordx4 v{vX+p}, s[28:31], s63 offen offset:{1024*p} lds")
        vm.issue(i)
    def a_dma(i):
        a_dma_setup(i)
        for p in range(4): a_dma_piece(i, p)
    for b in range(2):
        for c in range(3):
            a(f"s_add_u32 m0, s58, {(3*b+c)*4096}\ns_mov_b32 s63, {b*393216+c*128}")
            a(f"buffer_load_dwordx4 v246, s[32:35], s63 offen lds"); vm.issue('sh')
    a_dma(0)
    for g in range(2):
        for b in range(2):
            a(f"s_add_u32 m0, s58, {(6+2*g+b)*4096}\ns_add_u32 s63, s{41+g}, {b*40960}")
            a(f"buffer_load_dwordx4 v247, s[28:31], s63 offen lds"); vm.issue('sh')
    a_dma(1)
    a(f"""
    v_mul_u32_u24 v7, 1280, v5
    v_add_u32 v{vX}, v7, v6
    v_xor_b32 v{vX+1}, 64, v{vX}
    v_add_u32 v{vX+2}, {2*10240-2048}, v{vX}
    v_add_u32 v{vX+3}, {3*10240-3072}, v{vX+1}
    v_add_u32 v{vX+1}, {10240-1024}, v{vX+1}
    v_mov_b32 v{vCnt}, {CNT}
    v_mov_b32 v{vOne}, 1
    v_mov_b32 v248, 0
    v_lshlrev_b32 v249, 2, v1
    v_add_u32 v249, {CNT}, v249
    ds_write_b32 v249, v248
    v_add_u32 v250, {SH_BASE}, v4
    v_xor_b32 v251, 32, v250
    v_xor_b32 v252, 64, v250
    v_xor_b32 v253, 96, v250
    s_lshr_b32 s62, s23, 1
    s_lshl_b32 s62, s62, 13
    s_add_u32 s62, s62, {6*4096}
    v_xor_b32 v254, s47, v250
    v_add_u32 v254, s62, v254
    v_xor_b32 v255, 32, v254
    v_add_u32 v{vRd}, s59, v4
    v_xor_b32 v{vRd+1}, 32, v{vRd}
    v_xor_b32 v{vRd+2}, 64, v{vRd}
    v_xor_b32 v{vRd+3}, 96, v{vRd}
    s_add_u32 s36, s18, {P_OFF}
    s_addc_u32 s37, s19, 0
    s_mov_b32 s38, {PART_OFF + 32*8*20480}
    s_mov_b32 s39, 0x20000
    s_waitcnt vmcnt({vm.wait('sh')}) lgkmcnt(0)
    s_barrier
    """)
    stamp(1)
    def kf(b, s): return KF + (b*12 + s)*4
    def xf(b, s4): return XF + (b*4 + s4)*4
    wbuf = {}
    nb = 0
    for i, (t, u, c) in enumerate(stream):
        if t == 'W':
            wbuf[i] = WF + 16*(nb % 2); nb += 1
    def a_read(i):
        t, u, c = stream[i]
        for s4 in range(4):
            d = wbuf[i] + 4*s4 if t == 'W' else xf(c, s4)
            a(f"ds_read_b128 {vr(d,4)}, v{vRd+s4} offset:{(i%4)*16384}")
    for c in range(3):
        for b in range(2):
            for s4 in range(4):
                a(f"ds_read_b128 {vr(kf(b, 4*c+s4),4)}, v{250+s4} offset:{(3*b+c)*4096}")
    for b in range(2):
        for t in range(2):
            a(f"ds_read_b128 {vr(xf(b,t),4)}, v{254+t} offset:{b*4096}")
    a_read(0)
    a("s_waitcnt lgkmcnt(4)")
    lds_arrive(vCnt, C2, vOne)
    poll_lds(vCnt, C2, 4, 248)
    a_dma(2); a_dma(3)
    stamp(2)
    NS = len(stream)
    for i, (t, u, c) in enumerate(stream):
        a("s_waitcnt lgkmcnt(0)")
        nxt = i + 4 < NS
        if nxt: a_dma_setup(i+4)
        if t == 'W':
            order = [(0,0),(1,0),(0,1),(1,1),(0,2),(1,2),(0,3),(1,3)]
            if c == 2: order = [(0,0),(1,0),(0,1),(1,1),(0,2),(0,3),(1,2),(1,3)]
            def mf(b, s4):
                cin = "0" if (c == 0 and s4 == 0) else vr(MA+16*b, 16)
                a(f"{MF} {vr(MA+16*b,16)}, {vr(wbuf[i]+4*s4,4)}, {vr(kf(b,4*c+s4),4)}, {cin}")
            for k in range(4):
                mf(*order[k])
                if nxt: a_dma_piece(i+4, k)
            if i + 1 < NS:
                a(f"s_waitcnt vmcnt({vm.wait(i+1)})")
                a_read(i+1)
            for k in range(4, 8): mf(*order[k])
            if c == 2:
                half = 0 if u == 0 else (u+1) % 2
                a("s_nop 7\ns_nop 1")
                for b in range(2):
                    if b == 1: a("s_nop 3")
                    for t2 in range(2):
                        base = MA + 16*b + 8*t2
                        for k in range(4):
                            a(f"v_cvt_pk_bf16_f32 v{base+k}, v{base+2*k}, v{base+2*k+1}")
                a("s_nop 1")
                for b in range(2):
                    for t2 in range(2):
                        cin = "0" if (u == 0 and t2 == 0) else vr(SA+16*b, 16)
                        a(f"{MF} {vr(SA+16*b,16)}, {vr(MA+16*b+8*t2,4)}, {vr(xf(b,2*half+t2),4)}, {cin}")
        else:
            if nxt:
                for k in range(4): a_dma_piece(i+4, k)
            a(f"s_waitcnt vmcnt({vm.wait(i+1)})")
            a_read(i+1)
    stamp(3)
    a(f"""
    v_lshlrev_b32 v2, 4, v1
    v_add_u32 v2, s59, v2
    v_and_b32 v3, 15, v1
    v_bfe_u32 v5, v1, 4, 1
    v_lshlrev_b32 v5, 5, v5
    v_add_u32 v3, v3, v5
    s_lshl_b32 s62, s46, 4
    v_add_u32 v3, s62, v3               ; 32h + 16qh + q'
    v_lshlrev_b32 v3, 4, v3
    v_lshrrev_b32 v5, 5, v1             ; t
    v_lshl_add_u32 v6, v5, 10, v3
    v_lshl_add_u32 v3, v5, 11, v3       ; 2t*1024 + ...
    s_lshr_b32 s62, s23, 1              ; b
    s_lshl_b32 s63, s62, 14
    v_add_u32 v3, s63, v3
    s_nop 1
    """)
    for b in range(2):
        for q in range(4):
            a(f"ds_write_b128 v2, {vr(SA+16*b+4*q,4)} offset:{b*16384+q*1024}")
    a("s_waitcnt lgkmcnt(0)")
    lds_arrive(vCnt, C3, vOne)
    a(f"""
    s_lshl_b32 s64, s21, 3
    s_add_u32 s64, s64, s20             ; cluster
    s_lshl_b32 s65, s64, 14             ; cluster * 16384
    s_lshl_b32 s66, s62, 11             ; b*2048
    s_add_u32 s65, s65, s66
    s_lshl_b32 s66, s22, 12
    s_add_u32 s66, s66, s65             ; + r4*4096
    s_lshl_b32 s64, s64, 2
    v_mov_b32 v7, s64
    """)
    poll_lds(vCnt, C3, 4, 248)
    T = 16
    for w2 in range(4):
        for e in range(2):
            a(f"ds_read_b128 {vr(T+8*w2+4*e,4)}, v3 offset:{w2*4096+e*1024}")
    a("s_waitcnt lgkmcnt(4)")
    for k in range(8): a(f"v_add_f32 v{T+k}, v{T+k}, v{T+8+k}")
    a("s_waitcnt lgkmcnt(0)")
    for k in range(8): a(f"v_add_f32 v{T+16+k}, v{T+16+k}, v{T+24+k}")
    for k in range(8): a(f"v_add_f32 v{T+k}, v{T+k}, v{T+16+k}")
    import math, struct
    cs = (192 ** -0.5) * math.log2(math.e)
    csb = struct.unpack("<I", struct.pack("<f", cs))[0]
    a(f"""
    v_max3_f32 v48, v{T}, v{T+1}, v{T+2}
    v_max3_f32 v49, v{T+3}, v{T+4}, v{T+5}
    v_max3_f32 v48, v48, v{T+6}, v{T+7}
    v_max_f32 v48, v48, v49
    v_mov_b32 v49, v48
    s_mov_b32 s67, {hex(csb)}
    s_nop 0
    v_permlane16_swap_b32 v48, v49
    s_nop 0
    v_max_f32 v48, v48, v49
    v_mov_b32 v49, v48
    s_nop 1
    v_permlane32_swap_b32 v48, v49
    s_nop 0
    v_max_f32 v48, v48, v49
    """)
    for k in range(8):
        a(f"v_sub_f32 v{T+k}, v{T+k}, v48")
    for k in range(8):
        a(f"v_mul_f32 v{T+k}, s67, v{T+k}")
    for k in range(8):
        a(f"v_exp_f32 v{T+k}, v{T+k}")
    a(f"""
    s_nop 0
    v_add_f32 v48, v{T}, v{T+1}
    v_add_f32 v49, v{T+2}, v{T+3}
    v_add_f32 v50, v{T+4}, v{T+5}
    v_add_f32 v51, v{T+6}, v{T+7}
    v_add_f32 v48, v48, v49
    v_add_f32 v50, v50, v51
    v_add_f32 v48, v48, v50
    v_mov_b32 v49, v48
    s_nop 1
    v_permlane16_swap_b32 v48, v49
    s_nop 0
    v_add_f32 v48, v48, v49
    v_mov_b32 v49, v48
    s_nop 1
    v_permlane32_swap_b32 v48, v49
    s_nop 0
    v_add_f32 v48, v48, v49
    v_rcp_f32 v48, v48
    s_nop 0
    """)
    for k in range(8): a(f"v_mul_f32 v{T+k}, v{T+k}, v48")
    for k in range(4): a(f"v_cvt_pk_bf16_f32 v{52+k}, v{T+2*k}, v{T+2*k+1}")
    a(f"""
    buffer_store_dwordx4 v[52:55], v6, s[36:39], s66 offen sc1
    s_waitcnt vmcnt(0)
    s_mov_b64 exec, 1
    ds_add_rtn_u32 v248, v{vCnt}, v{vOne} offset:{C6}
    s_waitcnt lgkmcnt(0)
    v_readfirstlane_b32 s60, v248
    s_cmp_lg_u32 s60, 3
    s_cbranch_scc1 .Lnosig
    global_atomic_add v7, v{vOne}, s[16:17] sc1
    .Lnosig:
    """)
    stamp(4)
    a(f"""
    s_mov_b32 s61, {SPIN}
    .Lpollp:
    global_load_dword v248, v7, s[16:17] sc1
    s_waitcnt vmcnt(0)
    v_readfirstlane_b32 s60, v248
    s_cmp_ge_u32 s60, 4
    s_cbranch_scc1 .Lgotp
    s_sleep 2
    s_sub_u32 s61, s61, 1
    s_cbranch_scc0 .Lpollp
    .Lgotp:
    s_mov_b64 exec, -1
    v_lshlrev_b32 v2, 4, v1
    """)
    PF = 16
    for r in range(4):
        a(f"s_add_u32 s63, s65, {r*4096}")
        for t in range(2):
            a(f"buffer_load_dwordx4 {vr(PF+8*r+4*t,4)}, v2, s[36:39], s63 offen offset:{t*1024} sc1")
    a(f"""
    v_and_b32 v3, 0x33, v1
    v_bfe_u32 v5, v1, 2, 1              ; h'
    v_lshl_or_b32 v3, v5, 3, v3
    v_bfe_u32 v5, v1, 3, 1              ; a&1
    v_lshl_or_b32 v3, v5, 2, v3
    v_lshlrev_b32 v3, 4, v3
    s_lshl_b32 s63, s62, 11
    s_lshl_b32 s60, s46, 12
    s_add_u32 s63, s63, s60
    s_add_u32 s63, s63, {BR}
    v_add_u32 v3, s63, v3
    v_add_u32 v4, {2*20480}, v3
    s_lshl_b32 s60, s46, 2
    v_add_u32 v5, s60, v{vCnt}
    s_lshl_b32 s60, s21, 2
    s_add_u32 s60, s60, s22
    s_lshl_b32 s60, s60, 3
    s_add_u32 s60, s60, s20
    s_mul_i32 s68, s60, 20480
    s_mul_i32 s60, s62, 10240
    s_add_u32 s68, s68, s60
    s_lshl_b32 s60, s46, 11
    s_add_u32 s68, s68, s60
    s_add_u32 s68, s68, {PART_OFF}
    s_waitcnt vmcnt(0)
    """)
    stamp(5)
    VF, OA = 64, 112
    for k in range(3):
        if k == 2:
            a("s_cmp_lg_u32 s46, 0\ns_cbranch_scc1 .Ladone")
        poll_lds(5, C5 + 8*k, 4, 248)
        for r in range(4):
            for t in range(2):
                a(f"ds_read_b128 {vr(VF+8*r+4*t,4)}, v{3 + r//2} offset:{(r%2)*20480 + k*8192 + t*1024}")
        o = OA + 16*k
        for j in range(8):
            a(f"s_waitcnt lgkmcnt({7-j})")
            cin = "0" if j == 0 else vr(o, 16)
            a(f"{MF} {vr(o,16)}, {vr(VF+4*j,4)}, {vr(PF+4*j,4)}, {cin}")
        a("s_nop 7\ns_nop 3")
        for j in range(8):
            a(f"v_cvt_pk_bf16_f32 v{o+j}, v{o+2*j}, v{o+2*j+1}")
        a(f"s_add_u32 s63, s68, {k*4096}")
        st = " sc1" if opt.get('part_sc1') else ""
        a(f"buffer_store_dwordx4 {vr(o,4)}, v2, s[36:39], s63 offen{st}")
        a(f"buffer_store_dwordx4 {vr(o+4,4)}, v2, s[36:39], s63 offen offset:1024{st}")
    a(".Ladone:")
    stamp(6)
    if diag: a("s_waitcnt vmcnt(0)")
    stamp(7)
    a("s_branch .Lfin")

    a(".Lbwave:")
    vRd, vV, vWo, vTr, vCnt, vOne, vLn = 8, 12, 16, 21, 22, 23, 7
    WOF, VFR, ACC = 24, 64, 96
    vm = VM()
    a(f"""
    s_setprio {opt.get('prioB', 0)}
    s_sub_u32 s40, s23, 4               ; h'
    s_lshl_b32 s41, s20, 2
    s_add_u32 s41, s41, s40             ; head
    ; rotc = bp % 3 ; rots = 2*((bp/3)&1)
    s_mul_i32 s42, s21, 43
    s_lshr_b32 s42, s42, 7              ; bp/3
    s_mul_i32 s43, s42, 3
    s_sub_u32 s43, s21, s43             ; rotc
    s_and_b32 s42, s42, 1
    s_lshl_b32 s42, s42, 1              ; rots
    """)
    if opt.get('norot'): a("s_mov_b32 s42, 0\ns_mov_b32 s43, 0")
    for c in range(3):
        a(f"""s_add_u32 s60, s43, {c}
        s_sub_u32 s61, s60, 3
        s_cmp_ge_u32 s60, 3
        s_cselect_b32 s60, s61, s60
        s_lshl_b32 s{44+c}, s60, 7
        s_mul_i32 s{50+c}, s60, {64*1280}""")
    for s in range(4):
        a(f"s_xor_b32 s60, s42, {s}\ns_mul_i32 s{53+s}, s60, {16*1280}")
    a(f"""
    v_mul_u32_u24 v7, 384, v5
    v_add_u32 v{vV}, v7, v6
    v_xor_b32 v{vV+1}, 64, v{vV}
    v_add_u32 v{vV+2}, {2*3072-2048}, v{vV}
    v_add_u32 v{vV+3}, {3*3072-3072}, v{vV+1}
    v_add_u32 v{vV+1}, {3072-1024}, v{vV+1}
    s_lshl_b32 s57, s21, 6
    s_add_u32 s57, s57, s41
    s_mul_i32 s57, s57, 12288
    s_mul_i32 s58, s41, {192*1280}
    s_mul_i32 s60, s22, 320
    s_add_u32 s58, s58, s60
    s_mul_i32 s59, s40, 20480
    s_add_u32 s59, s59, {BR}
    """)
    for p in range(5):
        a(f"""v_add_u32 v2, {64*p}, v1
        v_mul_u32_u24 v3, 3277, v2
        v_lshrrev_b32 v3, 16, v3            ; row = q/20
        v_mul_u32_u24 v7, {1280-320}, v3
        v_lshl_add_u32 v{vWo+p}, v1, 4, v7""")
    a(f"""
    s_waitcnt lgkmcnt(0)
    s_add_u32 s24, s8, s57
    s_addc_u32 s25, s9, 0
    s_mov_b32 s26, {393216+12288}
    s_mov_b32 s27, 0x20000
    s_add_u32 s28, s12, s58
    s_addc_u32 s29, s13, 0
    s_mov_b32 s30, {191*1280+320}
    s_mov_b32 s31, 0x20000
    """)
    items = []
    for c in range(3):
        items += [('V', c, 0), ('V', c, 1)] + [('W', c, s) for s in range(4)]
    NI = len(items)
    def b_pieces(i):
        t, c, s = items[i]
        out = []
        n = 4 if t == 'V' else 5
        for p in range(n):
            setup = ""
            if p == 0:
                setup = f"s_add_u32 m0, s59, {(i%4)*5120}\n"
                setup += f"s_add_u32 s63, s{44+c}, {s*393216}\n" if t == 'V' else f"s_add_u32 s63, s{50+c}, s{53+s}\n"
            if p == 4:
                setup = f"s_add_u32 m0, s59, {(i%4)*5120+1024}\ns_add_u32 s63, s63, 1024\n"
            off = 1024*min(p, 3)
            if t == 'V':
                out.append((i, setup + f"buffer_load_dwordx4 v{vV+p}, s[24:27], s63 offen offset:{off} lds"))
            else:
                out.append((i, setup + f"buffer_load_dwordx4 v{vWo+p}, s[28:31], s63 offen offset:{off} lds"))
        return out
    def emit_piece(pc):
        a(pc[1]); vm.issue(pc[0])
    for i in range(4):
        for pc in b_pieces(i): emit_piece(pc)
    a(f"""
    s_lshl_b32 s60, s42, 5
    v_xor_b32 v4, s60, v4
    v_add_u32 v{vRd}, s59, v4
    v_xor_b32 v2, 32, v4
    v_add_u32 v{vRd+1}, s59, v2
    v_xor_b32 v2, 64, v4
    v_add_u32 v{vRd+2}, s59, v2
    v_xor_b32 v2, 96, v4
    v_add_u32 v{vRd+3}, s59, v2
    v_lshrrev_b32 v2, 5, v1
    v_bfe_u32 v3, v1, 2, 2
    v_lshl_add_u32 v2, v2, 3, v3
    v_mul_u32_u24 v2, 320, v2
    v_bfe_u32 v3, v1, 4, 1
    v_lshl_add_u32 v2, v3, 5, v2
    v_and_b32 v3, 3, v1
    v_lshl_add_u32 v2, v3, 3, v2
    v_add_u32 v{vTr}, s59, v2
    v_mov_b32 v{vCnt}, {CNT}
    v_mov_b32 v{vOne}, 1
    v_lshlrev_b32 v{vLn}, 4, v1
    v_add_u32 v{vLn}, s59, v{vLn}
    s_barrier
    """)
    stamp(1)
    def vf(b, s): return VFR + (b*4 + s)*4
    def acc(n, b): return ACC + (n*2 + b)*16
    wo_buf = {}
    nb = 0
    for i, (t, c, s) in enumerate(items):
        if t == 'W': wo_buf[i] = WOF + 20*(nb % 2); nb += 1
    def b_read_v(i, ss):
        t, c, b = items[i]
        for s in ss:
            a(f"ds_read_b128 {vr(vf(b,s),4)}, v{vRd+s} offset:{(i%4)*5120}")
    def b_read_w(i):
        for n in range(5):
            for e in range(2):
                a(f"ds_read_b64_tr_b16 {vr(wo_buf[i]+4*n+2*e,2)}, v{vTr} offset:{(i%4)*5120 + n*64 + e*1280}")
    a(f"s_waitcnt vmcnt({vm.wait(0)})"); b_read_v(0, range(4))
    a(f"s_waitcnt vmcnt({vm.wait(1)})"); b_read_v(1, range(4))
    a(f"s_waitcnt vmcnt({vm.wait(2)})"); b_read_w(2)
    stamp(2)
    issued = 4
    for i, (t, c, s) in enumerate(items):
        if t != 'W': continue
        a("s_waitcnt lgkmcnt(0)")
        pcs = []
        while issued < NI and issued <= i + 4:
            pcs += b_pieces(issued); issued += 1
        last = (i == NI - 1)
        mfs = [(n, b) for n in range(5) for b in range(2)]
        def mf(n, b):
            cin = "0" if (c == 0 and s == 0) else vr(acc(n, b), 16)
            a(f"{MF} {vr(acc(n,b),16)}, {vr(vf(b,s),4)}, {vr(wo_buf[i]+4*n,4)}, {cin}")
        if not last:
            nfirst = 6
            per = -(-len(pcs) // nfirst) if pcs else 0
            for k in range(nfirst):
                mf(*mfs[k])
                for pc in pcs[k*per:(k+1)*per]: emit_piece(pc)
            if s < 3:
                a(f"s_waitcnt vmcnt({vm.wait(i+1)})"); b_read_w(i+1)
            else:
                a(f"s_waitcnt vmcnt({vm.wait(i+2)})")
                b_read_v(i+1, range(3)); b_read_v(i+2, range(3))
                a(f"s_waitcnt vmcnt({vm.wait(i+3)})"); b_read_w(i+3)
            for k in range(nfirst, 10): mf(*mfs[k])
            if s == 3:
                b_read_v(i+1, [3]); b_read_v(i+2, [3])
        else:
            stamp(3)
            def fin(n):
                for b in range(2):
                    for t2 in range(2):
                        base = acc(n, b) + 8*t2
                        for k in range(4):
                            a(f"v_cvt_pk_bf16_f32 v{base+k}, v{base+2*k}, v{base+2*k+1}")
                        a(f"ds_write_b128 v{vLn}, {vr(base,4)} offset:{n*4096 + b*2048 + t2*1024}")
                a("s_waitcnt lgkmcnt(0)")
                lds_arrive(vCnt, C5 + 4*n, vOne)
            mf(0, 0); mf(0, 1); mf(1, 0); mf(1, 1)
            a("s_nop 7\ns_nop 1")
            for n in range(5):
                if n + 2 < 5:
                    mf(n+2, 0); mf(n+2, 1)
                fin(n)
    stamp(4)
    a(".Lfin:")
    if diag:
        a(f"""
        s_waitcnt lgkmcnt(0)
        s_add_u32 s12, s18, {WSB-NREC*4}
        s_addc_u32 s13, s19, 0
        s_mov_b32 s14, {NREC*4}
        s_mov_b32 s15, 0x20000
        s_lshl_b32 s16, s2, 3
        s_add_u32 s16, s16, s23
        s_lshl_b32 s16, s16, 6
        v_mov_b32 v5, s16
        """)
        for i in range(8):
            a(f"v_mov_b32 v6, s{70+2*i}\nbuffer_store_dword v6, v5, s[12:15], 0 offen offset:{4*i}")
    a(".Lend:\ns_endpgm")
    return a.text()

def gen_reduce(opt=None):
    a = Asm()
    a(f"""
    s_cmp_ge_u32 s2, 160
    s_cbranch_scc1 .Lrend
    s_load_dwordx2 s[4:5], s[0:1], 40
    s_load_dwordx2 s[6:7], s[0:1], 56
    s_mul_i32 s8, s2, 205
    s_lshr_b32 s8, s8, 10
    s_mul_i32 s9, s8, 5
    s_sub_u32 s9, s2, s9
    v_readfirstlane_b32 s10, v0
    s_lshr_b32 s10, s10, 6
    s_lshl_b32 s9, s9, 2
    s_add_u32 s9, s9, s10
    v_and_b32 v1, 63, v0
    v_lshlrev_b32 v2, 4, v1
    s_mul_i32 s11, s8, {8*20480}
    s_lshl_b32 s12, s9, 10
    s_add_u32 s11, s11, s12
    s_add_u32 s11, s11, {PART_OFF}
    s_waitcnt lgkmcnt(0)
    s_mov_b32 s16, s6
    s_mov_b32 s17, s7
    s_mov_b32 s18, {PART_OFF + 32*8*20480}
    s_mov_b32 s19, 0x20000
    """)
    for x in range(8):
        a(f"buffer_load_dwordx4 {vr(8+4*x,4)}, v2, s[16:19], s11 offen")
        if x < 7: a("s_add_u32 s11, s11, 20480")
    a(f"""
    s_mov_b32 s20, s4
    s_mov_b32 s21, s5
    s_mov_b32 s22, {512*640*2}
    s_mov_b32 s23, 0x20000
    ; out offset: row = (tile>>2)*64 + b*32 + q ; col = (tile&3)*160 + (piece%10)*16 + 8h
    s_cmp_ge_u32 s9, 10
    s_cselect_b32 s12, 1, 0
    s_mul_i32 s13, s12, 10
    s_sub_u32 s13, s9, s13
    s_lshr_b32 s14, s8, 2
    s_lshl_b32 s14, s14, 1
    s_add_u32 s14, s14, s12
    s_mul_i32 s14, s14, {32*1280}
    s_and_b32 s15, s8, 3
    s_mul_i32 s15, s15, 320
    s_add_u32 s14, s14, s15
    s_lshl_b32 s13, s13, 5
    s_add_u32 s14, s14, s13
    v_and_b32 v3, 31, v1
    v_mul_u32_u24 v3, 1280, v3
    v_lshrrev_b32 v4, 5, v1
    v_lshl_add_u32 v3, v4, 4, v3
    s_mov_b32 s24, 0xffff0000
    """)
    for x in range(8):
        a(f"s_waitcnt vmcnt({7-x})")
        for k in range(4):
            src = 8 + 4*x + k
            if x == 0:
                a(f"v_lshlrev_b32 v{40+2*k}, 16, v{src}\nv_and_b32 v{41+2*k}, s24, v{src}")
            else:
                a(f"v_lshlrev_b32 v4, 16, v{src}\nv_and_b32 v5, s24, v{src}")
                a(f"v_add_f32 v{40+2*k}, v{40+2*k}, v4\nv_add_f32 v{41+2*k}, v{41+2*k}, v5")
    for k in range(4):
        a(f"v_cvt_pk_bf16_f32 v{48+k}, v{40+2*k}, v{41+2*k}")
    a("""buffer_store_dwordx4 v[48:51], v3, s[20:23], s14 offen
    .Lrend:
    s_endpgm""")
    return a.text()

HEADER = open("standalone__mha_block_cached__near_ridge.s.ref").read().split("; Override")[0]

def make(path, diag=False, opt=None):
    ks = [dict(name="mha_main_kernel", body=gen_main(diag, opt), grid=256, block=512, lds=163840, vgpr=256, accum=256),
          dict(name="mha_reduce_kernel", body=gen_reduce(opt), grid=160, block=256, lds=0, vgpr=64, accum=64)]
    build(path, ks, HEADER)

if __name__ == "__main__":
    make("standalone__mha_block_cached__near_ridge.s")
    assemble("standalone__mha_block_cached__near_ridge.s", "k.co")
    make("kd.s", diag=True)
    assemble("kd.s", "kd.co")
```

```python
import sys
from asmlib import *

WSB = 268435456
NREC = 256*8*16
P_OFF = 0
PART_OFF = 1 << 20
SH_BASE = 36864
CNT = 77824
BR = 81920
C2, C3, C6, C5 = 0, 4, 8, 16
C7, C8 = 40, 44
SPIN = 1 << 22

class VM:
    def __init__(self): self.n = 0; self.last = {}
    def issue(self, tag, cnt=1):
        self.n += cnt; self.last[tag] = self.n
    def wait(self, tag): return self.n - self.last[tag]

MF = "v_mfma_f32_32x32x16_bf16"
def vr(b, n): return f"v[{b}:{b+n-1}]"

def gen_main(diag=False, opt=None):
    opt = opt or {}
    a0 = Asm()
    drop = set()
    def a(txt):
        out = []
        for line in txt.split("\n"):
            t = line.strip()
            if 'mf' in drop and t.startswith("v_mfma"): continue
            if 'rd' in drop and t.startswith("ds_read_b128") or 'rd' in drop and t.startswith("ds_read_b64_tr"): continue
            if 'dma' in drop and t.endswith(" lds"): continue
            out.append(line)
        a0("\n".join(out))
    a.text = a0.text
    ts_idx = [0]
    def stamp(i):
        if diag:
            a(f"s_memrealtime s[{70+2*i}:{71+2*i}]")
            a(f"s_memtime s[{86+2*i}:{87+2*i}]")
    lbl = [0]
    def poll_lds(vaddr, off, target, vt, sleep=0):
        lbl[0] += 1; L = lbl[0]
        a(f"""s_mov_b32 s61, {SPIN}
        .Lp{L}:
        ds_read_b32 v{vt}, v{vaddr} offset:{off}
        s_waitcnt lgkmcnt(0)
        v_readfirstlane_b32 s60, v{vt}
        s_cmp_ge_u32 s60, {target}
        s_cbranch_scc1 .Lq{L}
        {"s_sleep %d" % sleep if sleep else ""}
        s_sub_u32 s61, s61, 1
        s_cbranch_scc0 .Lp{L}
        .Lq{L}:""")
    def lds_arrive(vaddr, off, vone):
        a(f"""s_mov_b64 exec, 1
        ds_add_u32 v{vaddr}, v{vone} offset:{off}
        s_mov_b64 exec, -1""")
    def mod10(s):
        a(f"""s_sub_u32 s62, s{s}, 10
        s_cmp_ge_u32 s{s}, 10
        s_cselect_b32 s{s}, s62, s{s}""")

    a(f"""
    s_cmp_ge_u32 s2, 256
    s_cbranch_scc1 .Lend
    s_load_dwordx16 s[4:19], s[0:1], 0
    """)
    stamp(0)
    a(f"""
    v_readfirstlane_b32 s23, v0
    v_and_b32 v1, 63, v0                ; lane
    s_and_b32 s20, s2, 7
    s_lshr_b32 s21, s2, 5
    s_lshr_b32 s22, s2, 3
    s_and_b32 s22, s22, 3
    s_lshr_b32 s23, s23, 6              ; wave
    v_and_b32 v2, 31, v1
    v_lshrrev_b32 v3, 5, v1
    v_bfe_u32 v4, v1, 1, 3
    v_xor_b32 v4, v4, v3
    v_lshlrev_b32 v4, 4, v4
    v_lshl_add_u32 v4, v2, 7, v4        ; v4 = lanepart[0]
    v_lshrrev_b32 v5, 3, v1
    v_and_b32 v6, 7, v1
    v_lshrrev_b32 v7, 4, v1
    v_xor_b32 v6, v6, v7
    v_lshlrev_b32 v6, 4, v6
    s_cmp_ge_u32 s23, 4
    s_cbranch_scc1 .Lbwave
    """)
    vRd, vWq, vX, vCnt, vOne = 8, 12, 240, 244, 245
    KF, WF, XF, MA, SA = 16, 112, 144, 176, 208
    vm = VM()
    a(f"""
    s_setprio {opt.get('prioA', 2)}
    s_lshl_b32 s40, s20, 2
    s_add_u32 s40, s40, s22             ; head
    ; rho
    s_lshl_b32 s41, s21, 1
    s_cmp_ge_u32 s21, 5
    s_addc_u32 s41, s41, 0
    """)
    if opt.get('norot'): a("s_mov_b32 s41, 0")
    mod10(41)
    a("s_add_u32 s42, s41, 1"); mod10(42)
    a("s_add_u32 s43, s41, s23\ns_add_u32 s44, s43, 6\ns_add_u32 s43, s43, 2"); mod10(43); mod10(44)
    a(f"""
    s_cmp_ge_u32 s23, 2
    s_cselect_b32 s45, s42, s41
    s_lshl_b32 s45, s45, 1
    s_and_b32 s46, s23, 1
    s_add_u32 s45, s45, s46             ; u0
    s_mul_i32 s50, s45, 393216          ; su0
    s_mul_i32 s51, s43, 786432          ; su1
    s_add_u32 s52, s51, 393216          ; su2
    s_mul_i32 s53, s44, 786432          ; su3
    s_add_u32 s54, s53, 393216          ; su4
    s_lshl_b32 s41, s41, 7              ; L0*128
    s_lshl_b32 s42, s42, 7
    s_lshl_b32 s43, s43, 7              ; La*128
    s_lshl_b32 s44, s44, 7
    s_lshl_b32 s47, s46, 6              ; 64*(w&1)
    s_lshl_b32 s48, s23, 3              ; 8w
    v_add_u32 v7, s48, v5
    v_xor_b32 v2, s47, v6
    v_mul_u32_u24 v246, 384, v7
    v_add_u32 v246, v246, v2            ; K voffset
    v_mul_u32_u24 v247, 1280, v7
    v_add_u32 v247, v247, v2
    v_and_b32 v7, 4, v5
    v_add_u32 v7, v7, v5                ; r + 4*(r>>2)*1 -> (r&3) + 8*(r>>2)
    v_mul_u32_u24 v7, 12288, v7
    v_add_u32 v{vWq}, v7, v6
    v_xor_b32 v{vWq+1}, 64, v{vWq}
    v_add_u32 v{vWq+2}, {16*12288-2048}, v{vWq}
    v_add_u32 v{vWq+3}, {20*12288-3072}, v{vWq+1}
    v_add_u32 v{vWq+1}, {4*12288-1024}, v{vWq+1}
    s_mul_i32 s55, s40, 384
    s_lshl_b32 s56, s21, 6
    s_add_u32 s56, s56, s40
    s_mul_i32 s56, s56, 12288
    s_mul_i32 s57, s21, 81920
    s_lshl_b32 s58, s23, 10             ; w*1024
    s_add_u32 s58, s58, {SH_BASE}
    s_lshl_b32 s59, s23, 12
    s_waitcnt lgkmcnt(0)
    s_add_u32 s32, s6, s56
    s_addc_u32 s33, s7, 0
    s_mov_b32 s34, {393216+12288}
    s_mov_b32 s35, 0x20000
    s_add_u32 s28, s4, s57
    s_addc_u32 s29, s5, 0
    s_mov_b32 s30, 81920
    s_mov_b32 s31, 0x20000
    s_add_u32 s24, s10, s55
    s_addc_u32 s25, s11, 0
    s_mov_b32 s26, {639*12288+384}
    s_mov_b32 s27, 0x20000
    """)
    stream = []
    for u in range(5):
        for c in range(3):
            if u in (1, 3) and c == 2:
                stream += [('X', u, 0), ('X', u, 1)]
            stream.append(('W', u, c))
    def a_dma_setup(i):
        t, u, c = stream[i]
        a(f"s_add_u32 m0, s59, {(i % 4)*16384}")
        if t == 'W':
            a(f"s_add_u32 s63, s{50+u}, {c*128}")
        else:
            a(f"s_add_u32 s63, s{43 if u == 1 else 44}, {c*40960}")
    def a_dma_piece(i, p):
        t, u, c = stream[i]
        if t == 'W':
            a(f"buffer_load_dwordx4 v{vWq+p}, s[24:27], s63 offen offset:{1024*p} lds")
        else:
            a(f"buffer_load_dwordx4 v{vX+p}, s[28:31], s63 offen offset:{1024*p} lds")
        vm.issue(i)
    def a_dma(i):
        a_dma_setup(i)
        for p in range(4): a_dma_piece(i, p)
    for b in range(2):
        for c in range(3):
            a(f"s_add_u32 m0, s58, {(3*b+c)*4096}\ns_mov_b32 s63, {b*393216+c*128}")
            a(f"buffer_load_dwordx4 v246, s[32:35], s63 offen lds"); vm.issue('sh')
    a_dma(0)
    for g in range(2):
        for b in range(2):
            a(f"s_add_u32 m0, s58, {(6+2*g+b)*4096}\ns_add_u32 s63, s{41+g}, {b*40960}")
            a(f"buffer_load_dwordx4 v247, s[28:31], s63 offen lds"); vm.issue('sh')
    a_dma(1)
    a(f"""
    v_mul_u32_u24 v7, 1280, v5
    v_add_u32 v{vX}, v7, v6
    v_xor_b32 v{vX+1}, 64, v{vX}
    v_add_u32 v{vX+2}, {2*10240-2048}, v{vX}
    v_add_u32 v{vX+3}, {3*10240-3072}, v{vX+1}
    v_add_u32 v{vX+1}, {10240-1024}, v{vX+1}
    v_mov_b32 v{vCnt}, {CNT}
    v_mov_b32 v{vOne}, 1
    v_mov_b32 v248, 0
    v_lshlrev_b32 v249, 2, v1
    v_add_u32 v249, {CNT}, v249
    ds_write_b32 v249, v248
    v_add_u32 v250, {SH_BASE}, v4
    v_xor_b32 v251, 32, v250
    v_xor_b32 v252, 64, v250
    v_xor_b32 v253, 96, v250
    s_lshr_b32 s62, s23, 1
    s_lshl_b32 s62, s62, 13
    s_add_u32 s62, s62, {6*4096}
    v_xor_b32 v254, s47, v250
    v_add_u32 v254, s62, v254
    v_xor_b32 v255, 32, v254
    v_add_u32 v{vRd}, s59, v4
    v_xor_b32 v{vRd+1}, 32, v{vRd}
    v_xor_b32 v{vRd+2}, 64, v{vRd}
    v_xor_b32 v{vRd+3}, 96, v{vRd}
    s_add_u32 s36, s18, {P_OFF}
    s_addc_u32 s37, s19, 0
    s_mov_b32 s38, {PART_OFF + 32*8*20480}
    s_mov_b32 s39, 0x20000
    s_waitcnt vmcnt({vm.wait('sh')}) lgkmcnt(0)
    s_barrier
    """)
    stamp(1)
    def kf(b, s): return KF + (b*12 + s)*4
    def xf(b, s4): return XF + (b*4 + s4)*4
    wbuf = {}
    nb = 0
    for i, (t, u, c) in enumerate(stream):
        if t == 'W':
            wbuf[i] = WF + 16*(nb % 2); nb += 1
    def a_read(i):
        t, u, c = stream[i]
        for s4 in range(4):
            d = wbuf[i] + 4*s4 if t == 'W' else xf(c, s4)
            a(f"ds_read_b128 {vr(d,4)}, v{vRd+s4} offset:{(i%4)*16384}")
    for c in range(3):
        for b in range(2):
            for s4 in range(4):
                a(f"ds_read_b128 {vr(kf(b, 4*c+s4),4)}, v{250+s4} offset:{(3*b+c)*4096}")
    for b in range(2):
        for t in range(2):
            a(f"ds_read_b128 {vr(xf(b,t),4)}, v{254+t} offset:{b*4096}")
    a_read(0)
    a("s_waitcnt lgkmcnt(4)")
    lds_arrive(vCnt, C2, vOne)
    poll_lds(vCnt, C2, 4, 248)
    a_dma(2); a_dma(3)
    stamp(2)
    drop.update(opt.get('dropA', []))
    NS = len(stream)
    for i, (t, u, c) in enumerate(stream):
        a("s_waitcnt lgkmcnt(0)")
        nxt = i + 4 < NS
        if nxt: a_dma_setup(i+4)
        if t == 'W':
            order = [(0,0),(1,0),(0,1),(1,1),(0,2),(1,2),(0,3),(1,3)]
            if c == 2: order = [(0,0),(1,0),(0,1),(1,1),(0,2),(0,3),(1,2),(1,3)]
            def mf(b, s4):
                cin = "0" if (c == 0 and s4 == 0) else vr(MA+16*b, 16)
                a(f"{MF} {vr(MA+16*b,16)}, {vr(wbuf[i]+4*s4,4)}, {vr(kf(b,4*c+s4),4)}, {cin}")
            for k in range(4):
                mf(*order[k])
                if nxt: a_dma_piece(i+4, k)
            if i + 1 < NS:
                a(f"s_waitcnt vmcnt({vm.wait(i+1)})")
                a_read(i+1)
            for k in range(4, 8): mf(*order[k])
            if c == 2:
                half = 0 if u == 0 else (u+1) % 2
                a("s_nop 7\ns_nop 1")
                for b in range(2):
                    if b == 1: a("s_nop 3")
                    for t2 in range(2):
                        base = MA + 16*b + 8*t2
                        for k in range(4):
                            a(f"v_cvt_pk_bf16_f32 v{base+k}, v{base+2*k}, v{base+2*k+1}")
                a("s_nop 1")
                for b in range(2):
                    for t2 in range(2):
                        cin = "0" if (u == 0 and t2 == 0) else vr(SA+16*b, 16)
                        a(f"{MF} {vr(SA+16*b,16)}, {vr(MA+16*b+8*t2,4)}, {vr(xf(b,2*half+t2),4)}, {cin}")
        else:
            if nxt:
                for k in range(4): a_dma_piece(i+4, k)
            a(f"s_waitcnt vmcnt({vm.wait(i+1)})")
            a_read(i+1)
    drop.clear()
    stamp(3)
    a(f"""
    v_lshlrev_b32 v2, 4, v1
    v_add_u32 v2, s59, v2
    v_and_b32 v3, 15, v1
    v_bfe_u32 v5, v1, 4, 1
    v_lshlrev_b32 v5, 5, v5
    v_add_u32 v3, v3, v5
    s_lshl_b32 s62, s46, 4
    v_add_u32 v3, s62, v3               ; 32h + 16qh + q'
    v_lshlrev_b32 v3, 4, v3
    v_lshrrev_b32 v5, 5, v1             ; t
    v_lshl_add_u32 v6, v5, 10, v3
    v_lshl_add_u32 v3, v5, 11, v3       ; 2t*1024 + ...
    s_lshr_b32 s62, s23, 1              ; b
    s_lshl_b32 s63, s62, 14
    v_add_u32 v3, s63, v3
    s_nop 1
    """)
    for b in range(2):
        for q in range(4):
            a(f"ds_write_b128 v2, {vr(SA+16*b+4*q,4)} offset:{b*16384+q*1024}")
    a("s_waitcnt lgkmcnt(0)")
    lds_arrive(vCnt, C3, vOne)
    a(f"""
    s_lshl_b32 s64, s21, 3
    s_add_u32 s64, s64, s20             ; cluster
    s_lshl_b32 s65, s64, 14             ; cluster * 16384
    s_lshl_b32 s66, s62, 11             ; b*2048
    s_add_u32 s65, s65, s66
    s_lshl_b32 s66, s22, 12
    s_add_u32 s66, s66, s65             ; + r4*4096
    s_lshl_b32 s64, s64, 2
    v_mov_b32 v7, s64
    """)
    poll_lds(vCnt, C3, 4, 248)
    T = 16
    for w2 in range(4):
        for e in range(2):
            a(f"ds_read_b128 {vr(T+8*w2+4*e,4)}, v3 offset:{w2*4096+e*1024}")
    a("s_waitcnt lgkmcnt(4)")
    for k in range(8): a(f"v_add_f32 v{T+k}, v{T+k}, v{T+8+k}")
    a("s_waitcnt lgkmcnt(0)")
    for k in range(8): a(f"v_add_f32 v{T+16+k}, v{T+16+k}, v{T+24+k}")
    for k in range(8): a(f"v_add_f32 v{T+k}, v{T+k}, v{T+16+k}")
    import math, struct
    cs = (192 ** -0.5) * math.log2(math.e)
    csb = struct.unpack("<I", struct.pack("<f", cs))[0]
    a(f"""
    v_max3_f32 v48, v{T}, v{T+1}, v{T+2}
    v_max3_f32 v49, v{T+3}, v{T+4}, v{T+5}
    v_max3_f32 v48, v48, v{T+6}, v{T+7}
    v_max_f32 v48, v48, v49
    v_mov_b32 v49, v48
    s_mov_b32 s67, {hex(csb)}
    s_nop 0
    v_permlane16_swap_b32 v48, v49
    s_nop 0
    v_max_f32 v48, v48, v49
    v_mov_b32 v49, v48
    s_nop 1
    v_permlane32_swap_b32 v48, v49
    s_nop 0
    v_max_f32 v48, v48, v49
    """)
    for k in range(8):
        a(f"v_sub_f32 v{T+k}, v{T+k}, v48")
    for k in range(8):
        a(f"v_mul_f32 v{T+k}, s67, v{T+k}")
    for k in range(8):
        a(f"v_exp_f32 v{T+k}, v{T+k}")
    a(f"""
    s_nop 0
    v_add_f32 v48, v{T}, v{T+1}
    v_add_f32 v49, v{T+2}, v{T+3}
    v_add_f32 v50, v{T+4}, v{T+5}
    v_add_f32 v51, v{T+6}, v{T+7}
    v_add_f32 v48, v48, v49
    v_add_f32 v50, v50, v51
    v_add_f32 v48, v48, v50
    v_mov_b32 v49, v48
    s_nop 1
    v_permlane16_swap_b32 v48, v49
    s_nop 0
    v_add_f32 v48, v48, v49
    v_mov_b32 v49, v48
    s_nop 1
    v_permlane32_swap_b32 v48, v49
    s_nop 0
    v_add_f32 v48, v48, v49
    v_rcp_f32 v48, v48
    s_nop 0
    """)
    for k in range(8): a(f"v_mul_f32 v{T+k}, v{T+k}, v48")
    for k in range(4): a(f"v_cvt_pk_bf16_f32 v{52+k}, v{T+2*k}, v{T+2*k+1}")
    a(f"""
    buffer_store_dwordx4 v[52:55], v6, s[36:39], s66 offen sc1
    s_waitcnt vmcnt(0)
    s_mov_b64 exec, 1
    ds_add_rtn_u32 v248, v{vCnt}, v{vOne} offset:{C6}
    s_waitcnt lgkmcnt(0)
    v_readfirstlane_b32 s60, v248
    s_cmp_lg_u32 s60, 3
    s_cbranch_scc1 .Lnosig
    {"" if opt.get('nosync') else f"global_atomic_add v7, v{vOne}, s[16:17] sc1"}
    """)
    stamp(4)
    poll_lds(vCnt, C7, 4, 248, sleep=1)
    a(f"""
    s_mov_b32 s61, {SPIN}
    {"s_branch .Lgotp" if opt.get('nosync') else ""}
    .Lpollp:
    global_load_dword v248, v7, s[16:17] sc1
    s_waitcnt vmcnt(0)
    v_readfirstlane_b32 s60, v248
    s_cmp_ge_u32 s60, 4
    s_cbranch_scc1 .Lgotp
    s_sleep 4
    s_sub_u32 s61, s61, 1
    s_cbranch_scc0 .Lpollp
    .Lgotp:
    ds_add_u32 v{vCnt}, v{vOne} offset:{C8}
    s_branch .Lgo
    .Lnosig:
    """)
    stamp(4)
    poll_lds(vCnt, C8, 1, 248, sleep=1)
    a(f"""
    .Lgo:
    s_mov_b64 exec, -1
    v_lshlrev_b32 v2, 4, v1
    """)
    PF = 16
    for r in range(4):
        a(f"s_add_u32 s63, s65, {r*4096}")
        for t in range(2):
            a(f"buffer_load_dwordx4 {vr(PF+8*r+4*t,4)}, v2, s[36:39], s63 offen offset:{t*1024} sc1")
    a(f"""
    v_and_b32 v3, 0x33, v1
    v_bfe_u32 v5, v1, 2, 1              ; h'
    v_lshl_or_b32 v3, v5, 3, v3
    v_bfe_u32 v5, v1, 3, 1              ; a&1
    v_lshl_or_b32 v3, v5, 2, v3
    v_lshlrev_b32 v3, 4, v3
    s_lshl_b32 s63, s62, 11
    s_lshl_b32 s60, s46, 12
    s_add_u32 s63, s63, s60
    s_add_u32 s63, s63, {BR}
    v_add_u32 v3, s63, v3
    v_add_u32 v4, {2*20480}, v3
    s_lshl_b32 s60, s46, 2
    v_add_u32 v5, s60, v{vCnt}
    s_lshl_b32 s60, s21, 2
    s_add_u32 s60, s60, s22
    s_lshl_b32 s60, s60, 3
    s_add_u32 s60, s60, s20
    s_mul_i32 s68, s60, 20480
    s_mul_i32 s60, s62, 10240
    s_add_u32 s68, s68, s60
    s_lshl_b32 s60, s46, 11
    s_add_u32 s68, s68, s60
    s_add_u32 s68, s68, {PART_OFF}
    s_waitcnt vmcnt(0)
    """)
    stamp(5)
    VF, OA = 64, 112
    for k in range(3):
        if k == 2:
            a("s_cmp_lg_u32 s46, 0\ns_cbranch_scc1 .Ladone")
        poll_lds(5, C5 + 8*k, 4, 248)
        for r in range(4):
            for t in range(2):
                a(f"ds_read_b128 {vr(VF+8*r+4*t,4)}, v{3 + r//2} offset:{(r%2)*20480 + k*8192 + t*1024}")
        o = OA + 16*k
        for j in range(8):
            a(f"s_waitcnt lgkmcnt({7-j})")
            cin = "0" if j == 0 else vr(o, 16)
            a(f"{MF} {vr(o,16)}, {vr(VF+4*j,4)}, {vr(PF+4*j,4)}, {cin}")
        a("s_nop 7\ns_nop 3")
        for j in range(8):
            a(f"v_cvt_pk_bf16_f32 v{o+j}, v{o+2*j}, v{o+2*j+1}")
        a(f"s_add_u32 s63, s68, {k*4096}")
        st = " sc1" if opt.get('part_sc1') else ""
        a(f"buffer_store_dwordx4 {vr(o,4)}, v2, s[36:39], s63 offen{st}")
        a(f"buffer_store_dwordx4 {vr(o+4,4)}, v2, s[36:39], s63 offen offset:1024{st}")
    a(".Ladone:")
    stamp(6)
    if diag: a("s_waitcnt vmcnt(0)")
    stamp(7)
    a("s_branch .Lfin")

    a(".Lbwave:")
    vRd, vV, vWo, vTr, vCnt, vOne, vLn = 8, 12, 16, 21, 22, 23, 7
    WOF, VFR, ACC = 24, 64, 96
    vm = VM()
    a(f"""
    s_setprio {opt.get('prioB', 0)}
    s_sub_u32 s40, s23, 4               ; h'
    s_lshl_b32 s41, s20, 2
    s_add_u32 s41, s41, s40             ; head
    ; rotc = bp % 3 ; rots = 2*((bp/3)&1)
    s_mul_i32 s42, s21, 43
    s_lshr_b32 s42, s42, 7              ; bp/3
    s_mul_i32 s43, s42, 3
    s_sub_u32 s43, s21, s43             ; rotc
    s_and_b32 s42, s42, 1
    s_lshl_b32 s42, s42, 1              ; rots
    """)
    if opt.get('norot'): a("s_mov_b32 s42, 0\ns_mov_b32 s43, 0")
    for c in range(3):
        a(f"""s_add_u32 s60, s43, {c}
        s_sub_u32 s61, s60, 3
        s_cmp_ge_u32 s60, 3
        s_cselect_b32 s60, s61, s60
        s_lshl_b32 s{44+c}, s60, 7
        s_mul_i32 s{50+c}, s60, {64*1280}""")
    for s in range(4):
        a(f"s_xor_b32 s60, s42, {s}\ns_mul_i32 s{53+s}, s60, {16*1280}")
    a(f"""
    v_mul_u32_u24 v7, 384, v5
    v_add_u32 v{vV}, v7, v6
    v_xor_b32 v{vV+1}, 64, v{vV}
    v_add_u32 v{vV+2}, {2*3072-2048}, v{vV}
    v_add_u32 v{vV+3}, {3*3072-3072}, v{vV+1}
    v_add_u32 v{vV+1}, {3072-1024}, v{vV+1}
    s_lshl_b32 s57, s21, 6
    s_add_u32 s57, s57, s41
    s_mul_i32 s57, s57, 12288
    s_mul_i32 s58, s41, {192*1280}
    s_mul_i32 s60, s22, 320
    s_add_u32 s58, s58, s60
    s_mul_i32 s59, s40, 20480
    s_add_u32 s59, s59, {BR}
    """)
    for p in range(5):
        a(f"""v_add_u32 v2, {64*p}, v1
        v_mul_u32_u24 v3, 3277, v2
        v_lshrrev_b32 v3, 16, v3            ; row = q/20
        v_mul_u32_u24 v7, {1280-320}, v3
        v_lshl_add_u32 v{vWo+p}, v1, 4, v7""")
    a(f"""
    s_waitcnt lgkmcnt(0)
    s_add_u32 s24, s8, s57
    s_addc_u32 s25, s9, 0
    s_mov_b32 s26, {393216+12288}
    s_mov_b32 s27, 0x20000
    s_add_u32 s28, s12, s58
    s_addc_u32 s29, s13, 0
    s_mov_b32 s30, {191*1280+320}
    s_mov_b32 s31, 0x20000
    """)
    items = []
    for c in range(3):
        items += [('V', c, 0), ('V', c, 1)] + [('W', c, s) for s in range(4)]
    NI = len(items)
    def b_pieces(i):
        t, c, s = items[i]
        out = []
        n = 4 if t == 'V' else 5
        for p in range(n):
            setup = ""
            if p == 0:
                setup = f"s_add_u32 m0, s59, {(i%4)*5120}\n"
                setup += f"s_add_u32 s63, s{44+c}, {s*393216}\n" if t == 'V' else f"s_add_u32 s63, s{50+c}, s{53+s}\n"
            if p == 4:
                setup = f"s_add_u32 m0, s59, {(i%4)*5120+1024}\ns_add_u32 s63, s63, 1024\n"
            off = 1024*min(p, 3)
            if t == 'V':
                out.append((i, setup + f"buffer_load_dwordx4 v{vV+p}, s[24:27], s63 offen offset:{off} lds"))
            else:
                out.append((i, setup + f"buffer_load_dwordx4 v{vWo+p}, s[28:31], s63 offen offset:{off} lds"))
        return out
    def emit_piece(pc):
        a(pc[1]); vm.issue(pc[0])
    for i in range(4):
        for pc in b_pieces(i): emit_piece(pc)
    a(f"""
    s_lshl_b32 s60, s42, 5
    v_xor_b32 v4, s60, v4
    v_add_u32 v{vRd}, s59, v4
    v_xor_b32 v2, 32, v4
    v_add_u32 v{vRd+1}, s59, v2
    v_xor_b32 v2, 64, v4
    v_add_u32 v{vRd+2}, s59, v2
    v_xor_b32 v2, 96, v4
    v_add_u32 v{vRd+3}, s59, v2
    v_lshrrev_b32 v2, 5, v1
    v_bfe_u32 v3, v1, 2, 2
    v_lshl_add_u32 v2, v2, 3, v3
    v_mul_u32_u24 v2, 320, v2
    v_bfe_u32 v3, v1, 4, 1
    v_lshl_add_u32 v2, v3, 5, v2
    v_and_b32 v3, 3, v1
    v_lshl_add_u32 v2, v3, 3, v2
    v_add_u32 v{vTr}, s59, v2
    v_mov_b32 v{vCnt}, {CNT}
    v_mov_b32 v{vOne}, 1
    v_lshlrev_b32 v{vLn}, 4, v1
    v_add_u32 v{vLn}, s59, v{vLn}
    s_barrier
    """)
    stamp(1)
    def vf(b, s): return VFR + (b*4 + s)*4
    def acc(n, b): return ACC + (n*2 + b)*16
    wo_buf = {}
    nb = 0
    for i, (t, c, s) in enumerate(items):
        if t == 'W': wo_buf[i] = WOF + 20*(nb % 2); nb += 1
    def b_read_v(i, ss):
        t, c, b = items[i]
        for s in ss:
            a(f"ds_read_b128 {vr(vf(b,s),4)}, v{vRd+s} offset:{(i%4)*5120}")
    def b_read_w(i):
        for n in range(5):
            for e in range(2):
                a(f"ds_read_b64_tr_b16 {vr(wo_buf[i]+4*n+2*e,2)}, v{vTr} offset:{(i%4)*5120 + n*64 + e*1280}")
    a(f"s_waitcnt vmcnt({vm.wait(0)})"); b_read_v(0, range(4))
    a(f"s_waitcnt vmcnt({vm.wait(1)})"); b_read_v(1, range(4))
    a(f"s_waitcnt vmcnt({vm.wait(2)})"); b_read_w(2)
    stamp(2)
    drop.update(opt.get('dropB', []))
    issued = 4
    for i, (t, c, s) in enumerate(items):
        if t != 'W': continue
        a("s_waitcnt lgkmcnt(0)")
        pcs = []
        while issued < NI and issued <= i + 4:
            pcs += b_pieces(issued); issued += 1
        last = (i == NI - 1)
        mfs = [(n, b) for n in range(5) for b in range(2)]
        def mf(n, b):
            cin = "0" if (c == 0 and s == 0) else vr(acc(n, b), 16)
            a(f"{MF} {vr(acc(n,b),16)}, {vr(vf(b,s),4)}, {vr(wo_buf[i]+4*n,4)}, {cin}")
        if not last:
            nfirst = 6
            per = -(-len(pcs) // nfirst) if pcs else 0
            for k in range(nfirst):
                mf(*mfs[k])
                for pc in pcs[k*per:(k+1)*per]: emit_piece(pc)
            if pcs and issued == NI: lds_arrive(vCnt, C7, vOne)
            if s < 3:
                a(f"s_waitcnt vmcnt({vm.wait(i+1)})"); b_read_w(i+1)
            else:
                a(f"s_waitcnt vmcnt({vm.wait(i+2)})")
                b_read_v(i+1, range(3)); b_read_v(i+2, range(3))
                a(f"s_waitcnt vmcnt({vm.wait(i+3)})"); b_read_w(i+3)
            for k in range(nfirst, 10): mf(*mfs[k])
            if s == 3:
                b_read_v(i+1, [3]); b_read_v(i+2, [3])
        else:
            drop.clear()
            stamp(3)
            def fin(n):
                for b in range(2):
                    for t2 in range(2):
                        base = acc(n, b) + 8*t2
                        for k in range(4):
                            a(f"v_cvt_pk_bf16_f32 v{base+k}, v{base+2*k}, v{base+2*k+1}")
                        a(f"ds_write_b128 v{vLn}, {vr(base,4)} offset:{n*4096 + b*2048 + t2*1024}")
                a("s_waitcnt lgkmcnt(0)")
                lds_arrive(vCnt, C5 + 4*n, vOne)
            mf(0, 0); mf(0, 1); mf(1, 0); mf(1, 1)
            a("s_nop 7\ns_nop 1")
            for n in range(5):
                if n + 2 < 5:
                    mf(n+2, 0); mf(n+2, 1)
                fin(n)
    stamp(4)
    a(".Lfin:")
    if diag:
        a(f"""
        s_waitcnt lgkmcnt(0)
        s_add_u32 s12, s18, {WSB-NREC*4}
        s_addc_u32 s13, s19, 0
        s_mov_b32 s14, {NREC*4}
        s_mov_b32 s15, 0x20000
        s_lshl_b32 s16, s2, 3
        s_add_u32 s16, s16, s23
        s_lshl_b32 s16, s16, 6
        v_mov_b32 v5, s16
        """)
        for i in range(16):
            a(f"v_mov_b32 v6, s{70+2*i}\nbuffer_store_dword v6, v5, s[12:15], 0 offen offset:{4*i}")
    a(".Lend:\ns_endpgm")
    return a.text()

def gen_reduce(opt=None):
    a = Asm()
    a(f"""
    s_cmp_ge_u32 s2, 160
    s_cbranch_scc1 .Lrend
    s_load_dwordx2 s[4:5], s[0:1], 40
    s_load_dwordx2 s[6:7], s[0:1], 56
    s_mul_i32 s8, s2, 205
    s_lshr_b32 s8, s8, 10
    s_mul_i32 s9, s8, 5
    s_sub_u32 s9, s2, s9
    v_readfirstlane_b32 s10, v0
    s_lshr_b32 s10, s10, 6
    s_lshl_b32 s9, s9, 2
    s_add_u32 s9, s9, s10
    v_and_b32 v1, 63, v0
    v_lshlrev_b32 v2, 4, v1
    s_mul_i32 s11, s8, {8*20480}
    s_lshl_b32 s12, s9, 10
    s_add_u32 s11, s11, s12
    s_add_u32 s11, s11, {PART_OFF}
    s_waitcnt lgkmcnt(0)
    s_mov_b32 s16, s6
    s_mov_b32 s17, s7
    s_mov_b32 s18, {PART_OFF + 32*8*20480}
    s_mov_b32 s19, 0x20000
    """)
    for x in range(8):
        a(f"buffer_load_dwordx4 {vr(8+4*x,4)}, v2, s[16:19], s11 offen")
        if x < 7: a("s_add_u32 s11, s11, 20480")
    a(f"""
    s_mov_b32 s20, s4
    s_mov_b32 s21, s5
    s_mov_b32 s22, {512*640*2}
    s_mov_b32 s23, 0x20000
    ; out offset: row = (tile>>2)*64 + b*32 + q ; col = (tile&3)*160 + (piece%10)*16 + 8h
    s_cmp_ge_u32 s9, 10
    s_cselect_b32 s12, 1, 0
    s_mul_i32 s13, s12, 10
    s_sub_u32 s13, s9, s13
    s_lshr_b32 s14, s8, 2
    s_lshl_b32 s14, s14, 1
    s_add_u32 s14, s14, s12
    s_mul_i32 s14, s14, {32*1280}
    s_and_b32 s15, s8, 3
    s_mul_i32 s15, s15, 320
    s_add_u32 s14, s14, s15
    s_lshl_b32 s13, s13, 5
    s_add_u32 s14, s14, s13
    v_and_b32 v3, 31, v1
    v_mul_u32_u24 v3, 1280, v3
    v_lshrrev_b32 v4, 5, v1
    v_lshl_add_u32 v3, v4, 4, v3
    s_mov_b32 s24, 0xffff0000
    """)
    for x in range(8):
        a(f"s_waitcnt vmcnt({7-x})")
        for k in range(4):
            src = 8 + 4*x + k
            if x == 0:
                a(f"v_lshlrev_b32 v{40+2*k}, 16, v{src}\nv_and_b32 v{41+2*k}, s24, v{src}")
            else:
                a(f"v_lshlrev_b32 v4, 16, v{src}\nv_and_b32 v5, s24, v{src}")
                a(f"v_add_f32 v{40+2*k}, v{40+2*k}, v4\nv_add_f32 v{41+2*k}, v{41+2*k}, v5")
    for k in range(4):
        a(f"v_cvt_pk_bf16_f32 v{48+k}, v{40+2*k}, v{41+2*k}")
    a("""buffer_store_dwordx4 v[48:51], v3, s[20:23], s14 offen
    .Lrend:
    s_endpgm""")
    return a.text()

HEADER = open("standalone__mha_block_cached__near_ridge.s.ref").read().split("; Override")[0]

def make(path, diag=False, opt=None):
    ks = [dict(name="mha_main_kernel", body=gen_main(diag, opt), grid=256, block=512, lds=163840, vgpr=256, accum=256),
          dict(name="mha_reduce_kernel", body=gen_reduce(opt), grid=160, block=256, lds=0, vgpr=64, accum=64)]
    build(path, ks, HEADER)

if __name__ == "__main__" and len(sys.argv) > 2:
    o = eval("dict(" + sys.argv[2] + ")")
    make(sys.argv[1] + ".s", diag=True, opt=o)
    assemble(sys.argv[1] + ".s", sys.argv[1] + ".co")
elif __name__ == "__main__":
    make("standalone__mha_block_cached__near_ridge.s")
    assemble("standalone__mha_block_cached__near_ridge.s", "k.co")
    make("kd.s", diag=True)
    assemble("kd.s", "kd.co")
```

```python
import gen
from asmlib import *
WSB = gen.WSB
def main_t0():
    body = gen.gen_main(False, None)
    body = body.replace("    s_load_dwordx16 s[4:19], s[0:1], 0\n", "    s_load_dwordx16 s[4:19], s[0:1], 0\n    s_memrealtime s[70:71]\n", 1)
    body = body.replace(".Lfin:\n", f""".Lfin:
    s_cmp_lg_u32 s2, 0
    s_cbranch_scc1 .Lend
    s_add_u32 s12, s18, {WSB-256}
    s_addc_u32 s13, s19, 0
    s_mov_b32 s14, 256
    s_mov_b32 s15, 0x20000
    v_mov_b32 v5, 0
    v_mov_b32 v6, s70
    buffer_store_dword v6, v5, s[12:15], 0 offen
""")
    return body
def probe(mult):
    return f"""
    s_cmp_lg_u32 s2, 0
    s_cbranch_scc1 .Lpend
    s_load_dwordx2 s[6:7], s[0:1], 56
    s_memrealtime s[8:9]
    s_waitcnt lgkmcnt(0)
    s_add_u32 s6, s6, {WSB-256}
    s_addc_u32 s7, s7, 0
    s_load_dword s10, s[6:7], 0
    s_waitcnt lgkmcnt(0)
    s_sub_u32 s11, s8, s10
    s_min_u32 s11, s11, 10000
    s_mul_i32 s11, s11, {mult}
.Lps:
    s_memrealtime s[12:13]
    s_waitcnt lgkmcnt(0)
    s_sub_u32 s14, s12, s8
    s_cmp_lt_u32 s14, s11
    s_cbranch_scc1 .Lps
.Lpend:
    s_endpgm
"""
def mk(path, mult):
    m = dict(name="mha_main_kernel", body=main_t0(), grid=256, block=512, lds=163840, vgpr=256, accum=256)
    r = dict(name="mha_reduce_kernel", body=gen.gen_reduce(None), grid=160, block=256, lds=0, vgpr=64, accum=64)
    f = dict(name="mha_probe_kernel", body=probe(mult), grid=1, block=64, lds=0, vgpr=64, accum=64)
    build(path, [m, r, f], gen.HEADER)
    assemble(path, path + ".co")
mk("cal_p0.s", 0); mk("cal_p4.s", 4)
```

```python
import sys
from asmlib import *

WSB = 268435456
NREC = 256*8*16
P_OFF = 0
PART_OFF = 1 << 20
SH_BASE = 36864
CNT = 77824
BR = 81920
C2, C3, C6, C5 = 0, 4, 8, 16
C7, C8 = 40, 44
SPIN = 1 << 22
GSPIN = 1 << 16
FLG = 4096
BOX0 = 65536
BOXSZ = 28672
WSN = BOX0 + 256*BOXSZ
EPK = 0x9E3779B1

class VM:
    def __init__(self): self.n = 0; self.last = {}
    def issue(self, tag, cnt=1):
        self.n += cnt; self.last[tag] = self.n
    def wait(self, tag): return self.n - self.last[tag]

MF = "v_mfma_f32_32x32x16_bf16"
def vr(b, n): return f"v[{b}:{b+n-1}]"

def gen_main(diag=False, opt=None):
    opt = opt or {}
    a0 = Asm()
    drop = set()
    def a(txt):
        out = []
        for line in txt.split("\n"):
            t = line.strip()
            if 'mf' in drop and t.startswith("v_mfma"): continue
            if 'rd' in drop and t.startswith("ds_read_b128") or 'rd' in drop and t.startswith("ds_read_b64_tr"): continue
            if 'dma' in drop and t.endswith(" lds"): continue
            out.append(line)
        a0("\n".join(out))
    a.text = a0.text
    ts_idx = [0]
    def stamp(i):
        if diag:
            a(f"s_memrealtime s[{70+2*i}:{71+2*i}]")
            a(f"s_memtime s[{86+2*i}:{87+2*i}]")
    lbl = [0]
    def poll_lds(vaddr, off, target, vt, sleep=0):
        lbl[0] += 1; L = lbl[0]
        a(f"""s_mov_b32 s61, {SPIN}
        .Lp{L}:
        ds_read_b32 v{vt}, v{vaddr} offset:{off}
        s_waitcnt lgkmcnt(0)
        v_readfirstlane_b32 s60, v{vt}
        s_cmp_ge_u32 s60, {target}
        s_cbranch_scc1 .Lq{L}
        {"s_sleep %d" % sleep if sleep else ""}
        s_sub_u32 s61, s61, 1
        s_cbranch_scc0 .Lp{L}
        .Lq{L}:""")
    def lds_arrive(vaddr, off, vone):
        a(f"""s_mov_b64 exec, 1
        ds_add_u32 v{vaddr}, v{vone} offset:{off}
        s_mov_b64 exec, -1""")
    def mod10(s):
        a(f"""s_sub_u32 s62, s{s}, 10
        s_cmp_ge_u32 s{s}, 10
        s_cselect_b32 s{s}, s62, s{s}""")

    a(f"""
    s_cmp_ge_u32 s2, 256
    s_cbranch_scc1 .Lend
    s_load_dwordx16 s[4:19], s[0:1], 0
    """)
    stamp(0)
    a(f"""
    v_readfirstlane_b32 s23, v0
    v_and_b32 v1, 63, v0                ; lane
    s_and_b32 s20, s2, 7
    s_lshr_b32 s21, s2, 5
    s_lshr_b32 s22, s2, 3
    s_and_b32 s22, s22, 3
    s_lshr_b32 s23, s23, 6              ; wave
    v_and_b32 v2, 31, v1
    v_lshrrev_b32 v3, 5, v1
    v_bfe_u32 v4, v1, 1, 3
    v_xor_b32 v4, v4, v3
    v_lshlrev_b32 v4, 4, v4
    v_lshl_add_u32 v4, v2, 7, v4        ; v4 = lanepart[0]
    v_lshrrev_b32 v5, 3, v1
    v_and_b32 v6, 7, v1
    v_lshrrev_b32 v7, 4, v1
    v_xor_b32 v6, v6, v7
    v_lshlrev_b32 v6, 4, v6
    s_cmp_ge_u32 s23, 4
    s_cbranch_scc1 .Lbwave
    """)
    vRd, vWq, vX, vCnt, vOne = 8, 12, 240, 244, 245
    KF, WF, XF, MA, SA = 16, 112, 144, 176, 208
    vm = VM()
    a(f"""
    s_setprio {opt.get('prioA', 2)}
    s_lshl_b32 s40, s20, 2
    s_add_u32 s40, s40, s22             ; head
    ; rho
    s_lshl_b32 s41, s21, 1
    s_cmp_ge_u32 s21, 5
    s_addc_u32 s41, s41, 0
    """)
    if opt.get('norot'): a("s_mov_b32 s41, 0")
    mod10(41)
    a("s_add_u32 s42, s41, 1"); mod10(42)
    a("s_add_u32 s43, s41, s23\ns_add_u32 s44, s43, 6\ns_add_u32 s43, s43, 2"); mod10(43); mod10(44)
    a(f"""
    s_cmp_ge_u32 s23, 2
    s_cselect_b32 s45, s42, s41
    s_lshl_b32 s45, s45, 1
    s_and_b32 s46, s23, 1
    s_add_u32 s45, s45, s46             ; u0
    s_mul_i32 s50, s45, 393216          ; su0
    s_mul_i32 s51, s43, 786432          ; su1
    s_add_u32 s52, s51, 393216          ; su2
    s_mul_i32 s53, s44, 786432          ; su3
    s_add_u32 s54, s53, 393216          ; su4
    s_lshl_b32 s41, s41, 7              ; L0*128
    s_lshl_b32 s42, s42, 7
    s_lshl_b32 s43, s43, 7              ; La*128
    s_lshl_b32 s44, s44, 7
    s_lshl_b32 s47, s46, 6              ; 64*(w&1)
    s_lshl_b32 s48, s23, 3              ; 8w
    v_add_u32 v7, s48, v5
    v_xor_b32 v2, s47, v6
    v_mul_u32_u24 v246, 384, v7
    v_add_u32 v246, v246, v2            ; K voffset
    v_mul_u32_u24 v247, 1280, v7
    v_add_u32 v247, v247, v2
    v_and_b32 v7, 4, v5
    v_add_u32 v7, v7, v5                ; r + 4*(r>>2)*1 -> (r&3) + 8*(r>>2)
    v_mul_u32_u24 v7, 12288, v7
    v_add_u32 v{vWq}, v7, v6
    v_xor_b32 v{vWq+1}, 64, v{vWq}
    v_add_u32 v{vWq+2}, {16*12288-2048}, v{vWq}
    v_add_u32 v{vWq+3}, {20*12288-3072}, v{vWq+1}
    v_add_u32 v{vWq+1}, {4*12288-1024}, v{vWq+1}
    s_mul_i32 s55, s40, 384
    s_lshl_b32 s56, s21, 6
    s_add_u32 s56, s56, s40
    s_mul_i32 s56, s56, 12288
    s_mul_i32 s57, s21, 81920
    s_lshl_b32 s58, s23, 10             ; w*1024
    s_add_u32 s58, s58, {SH_BASE}
    s_lshl_b32 s59, s23, 12
    s_lshl_b32 s69, s21, 7
    s_waitcnt lgkmcnt(0)
    s_load_dword s69, s[18:19], s69
    s_add_u32 s32, s6, s56
    s_addc_u32 s33, s7, 0
    s_mov_b32 s34, {393216+12288}
    s_mov_b32 s35, 0x20000
    s_add_u32 s28, s4, s57
    s_addc_u32 s29, s5, 0
    s_mov_b32 s30, 81920
    s_mov_b32 s31, 0x20000
    s_add_u32 s24, s10, s55
    s_addc_u32 s25, s11, 0
    s_mov_b32 s26, {639*12288+384}
    s_mov_b32 s27, 0x20000
    """)
    stream = []
    for u in range(5):
        for c in range(3):
            if u in (1, 3) and c == 2:
                stream += [('X', u, 0), ('X', u, 1)]
            stream.append(('W', u, c))
    def a_dma_setup(i):
        t, u, c = stream[i]
        a(f"s_add_u32 m0, s59, {(i % 4)*16384}")
        if t == 'W':
            a(f"s_add_u32 s63, s{50+u}, {c*128}")
        else:
            a(f"s_add_u32 s63, s{43 if u == 1 else 44}, {c*40960}")
    def a_dma_piece(i, p):
        t, u, c = stream[i]
        if t == 'W':
            a(f"buffer_load_dwordx4 v{vWq+p}, s[24:27], s63 offen offset:{1024*p} lds")
        else:
            a(f"buffer_load_dwordx4 v{vX+p}, s[28:31], s63 offen offset:{1024*p} lds")
        vm.issue(i)
    def a_dma(i):
        a_dma_setup(i)
        for p in range(4): a_dma_piece(i, p)
    for b in range(2):
        for c in range(3):
            a(f"s_add_u32 m0, s58, {(3*b+c)*4096}\ns_mov_b32 s63, {b*393216+c*128}")
            a(f"buffer_load_dwordx4 v246, s[32:35], s63 offen lds"); vm.issue('sh')
    a_dma(0)
    for g in range(2):
        for b in range(2):
            a(f"s_add_u32 m0, s58, {(6+2*g+b)*4096}\ns_add_u32 s63, s{41+g}, {b*40960}")
            a(f"buffer_load_dwordx4 v247, s[28:31], s63 offen lds"); vm.issue('sh')
    a_dma(1)
    a(f"""
    v_mul_u32_u24 v7, 1280, v5
    v_add_u32 v{vX}, v7, v6
    v_xor_b32 v{vX+1}, 64, v{vX}
    v_add_u32 v{vX+2}, {2*10240-2048}, v{vX}
    v_add_u32 v{vX+3}, {3*10240-3072}, v{vX+1}
    v_add_u32 v{vX+1}, {10240-1024}, v{vX+1}
    v_mov_b32 v{vCnt}, {CNT}
    v_mov_b32 v{vOne}, 1
    v_mov_b32 v248, 0
    v_lshlrev_b32 v249, 2, v1
    v_add_u32 v249, {CNT}, v249
    ds_write_b32 v249, v248
    v_add_u32 v250, {SH_BASE}, v4
    v_xor_b32 v251, 32, v250
    v_xor_b32 v252, 64, v250
    v_xor_b32 v253, 96, v250
    s_lshr_b32 s62, s23, 1
    s_lshl_b32 s62, s62, 13
    s_add_u32 s62, s62, {6*4096}
    v_xor_b32 v254, s47, v250
    v_add_u32 v254, s62, v254
    v_xor_b32 v255, 32, v254
    v_add_u32 v{vRd}, s59, v4
    v_xor_b32 v{vRd+1}, 32, v{vRd}
    v_xor_b32 v{vRd+2}, 64, v{vRd}
    v_xor_b32 v{vRd+3}, 96, v{vRd}
    s_mov_b32 s36, s18
    s_mov_b32 s37, s19
    s_mov_b32 s38, {WSN}
    s_mov_b32 s39, 0x20000
    v_bfe_u32 v2, v1, 2, 3
    v_and_b32 v3, 3, v1
    v_lshlrev_b32 v3, 2, v3
    v_lshl_add_u32 v2, v2, 7, v3
    s_lshl_b32 s62, s21, 12
    s_lshl_b32 s63, s23, 10
    s_add_u32 s62, s62, s63
    s_add_u32 s62, s62, {FLG}
    v_add_u32 v3, s62, v2
    s_waitcnt vmcnt({vm.wait('sh')}) lgkmcnt(0)
    s_add_u32 s69, s69, {EPK}
    s_barrier
    """)
    stamp(1)
    def kf(b, s): return KF + (b*12 + s)*4
    def xf(b, s4): return XF + (b*4 + s4)*4
    wbuf = {}
    nb = 0
    for i, (t, u, c) in enumerate(stream):
        if t == 'W':
            wbuf[i] = WF + 16*(nb % 2); nb += 1
    def a_read(i):
        t, u, c = stream[i]
        for s4 in range(4):
            d = wbuf[i] + 4*s4 if t == 'W' else xf(c, s4)
            a(f"ds_read_b128 {vr(d,4)}, v{vRd+s4} offset:{(i%4)*16384}")
    for c in range(3):
        for b in range(2):
            for s4 in range(4):
                a(f"ds_read_b128 {vr(kf(b, 4*c+s4),4)}, v{250+s4} offset:{(3*b+c)*4096}")
    for b in range(2):
        for t in range(2):
            a(f"ds_read_b128 {vr(xf(b,t),4)}, v{254+t} offset:{b*4096}")
    a_read(0)
    a("s_waitcnt lgkmcnt(4)")
    lds_arrive(vCnt, C2, vOne)
    poll_lds(vCnt, C2, 4, 248)
    a_dma(2); a_dma(3)
    stamp(2)
    drop.update(opt.get('dropA', []))
    NS = len(stream)
    for i, (t, u, c) in enumerate(stream):
        a("s_waitcnt lgkmcnt(0)")
        nxt = i + 4 < NS
        if nxt: a_dma_setup(i+4)
        if i == NS - 3:
            a("buffer_load_dword v5, v3, s[36:39], 0 offen sc1"); vm.issue('fl')
        if t == 'W':
            order = [(0,0),(1,0),(0,1),(1,1),(0,2),(1,2),(0,3),(1,3)]
            if c == 2: order = [(0,0),(1,0),(0,1),(1,1),(0,2),(0,3),(1,2),(1,3)]
            def mf(b, s4):
                cin = "0" if (c == 0 and s4 == 0) else vr(MA+16*b, 16)
                a(f"{MF} {vr(MA+16*b,16)}, {vr(wbuf[i]+4*s4,4)}, {vr(kf(b,4*c+s4),4)}, {cin}")
            for k in range(4):
                mf(*order[k])
                if nxt: a_dma_piece(i+4, k)
            if i + 1 < NS:
                a(f"s_waitcnt vmcnt({vm.wait(i+1)})")
                a_read(i+1)
            for k in range(4, 8): mf(*order[k])
            if c == 2:
                half = 0 if u == 0 else (u+1) % 2
                a("s_nop 7\ns_nop 1")
                for b in range(2):
                    if b == 1: a("s_nop 3")
                    for t2 in range(2):
                        base = MA + 16*b + 8*t2
                        for k in range(4):
                            a(f"v_cvt_pk_bf16_f32 v{base+k}, v{base+2*k}, v{base+2*k+1}")
                a("s_nop 1")
                for b in range(2):
                    for t2 in range(2):
                        cin = "0" if (u == 0 and t2 == 0) else vr(SA+16*b, 16)
                        a(f"{MF} {vr(SA+16*b,16)}, {vr(MA+16*b+8*t2,4)}, {vr(xf(b,2*half+t2),4)}, {cin}")
        else:
            if nxt:
                for k in range(4): a_dma_piece(i+4, k)
            a(f"s_waitcnt vmcnt({vm.wait(i+1)})")
            a_read(i+1)
    drop.clear()
    stamp(3)
    a(f"""
    s_mov_b32 s61, {GSPIN}
    .Lflchk:
    s_waitcnt vmcnt(0)
    v_cmp_ne_u32 vcc, s69, v5
    s_cbranch_vccz .Lflok
    buffer_load_dword v5, v3, s[36:39], 0 offen sc1
    s_sub_u32 s61, s61, 1
    s_cbranch_scc0 .Lflchk
    s_waitcnt vmcnt(0)
    .Lflok:
    """)
    a(f"""
    v_lshlrev_b32 v2, 4, v1
    v_add_u32 v2, s59, v2
    v_and_b32 v3, 15, v1
    v_bfe_u32 v5, v1, 4, 1
    v_lshlrev_b32 v5, 5, v5
    v_add_u32 v3, v3, v5
    s_lshl_b32 s62, s46, 4
    v_add_u32 v3, s62, v3               ; 32h + 16qh + q'
    v_lshlrev_b32 v3, 4, v3
    v_lshrrev_b32 v5, 5, v1             ; t
    v_lshl_add_u32 v6, v5, 10, v3
    v_lshl_add_u32 v3, v5, 11, v3       ; 2t*1024 + ...
    s_lshr_b32 s62, s23, 1              ; b
    s_lshl_b32 s63, s62, 14
    v_add_u32 v3, s63, v3
    s_nop 1
    """)
    for b in range(2):
        for q in range(4):
            a(f"ds_write_b128 v2, {vr(SA+16*b+4*q,4)} offset:{b*16384+q*1024}")
    a("s_waitcnt lgkmcnt(0)")
    lds_arrive(vCnt, C3, vOne)
    a(f"""
    s_andn2_b32 s64, s2, 24             ; bp*32 + x
    s_mul_i32 s65, s64, {BOXSZ}
    s_lshl_b32 s66, s62, 11             ; b*2048
    s_add_u32 s65, s65, s66
    s_add_u32 s65, s65, {BOX0}
    s_mul_i32 s66, s22, {8*BOXSZ}
    s_add_u32 s66, s66, s65             ; own
    v_bfe_u32 v7, v1, 1, 2
    v_mul_u32_u24 v7, {8*BOXSZ}, v7
    v_and_b32 v5, 1, v1
    v_lshl_add_u32 v7, v5, 8, v7
    """)
    poll_lds(vCnt, C3, 4, 248)
    T = 16
    for w2 in range(4):
        for e in range(2):
            a(f"ds_read_b128 {vr(T+8*w2+4*e,4)}, v3 offset:{w2*4096+e*1024}")
    a("s_waitcnt lgkmcnt(4)")
    for k in range(8): a(f"v_add_f32 v{T+k}, v{T+k}, v{T+8+k}")
    a("s_waitcnt lgkmcnt(0)")
    for k in range(8): a(f"v_add_f32 v{T+16+k}, v{T+16+k}, v{T+24+k}")
    for k in range(8): a(f"v_add_f32 v{T+k}, v{T+k}, v{T+16+k}")
    import math, struct
    cs = (192 ** -0.5) * math.log2(math.e)
    csb = struct.unpack("<I", struct.pack("<f", cs))[0]
    a(f"""
    v_max3_f32 v48, v{T}, v{T+1}, v{T+2}
    v_max3_f32 v49, v{T+3}, v{T+4}, v{T+5}
    v_max3_f32 v48, v48, v{T+6}, v{T+7}
    v_max_f32 v48, v48, v49
    v_mov_b32 v49, v48
    s_mov_b32 s67, {hex(csb)}
    s_nop 0
    v_permlane16_swap_b32 v48, v49
    s_nop 0
    v_max_f32 v48, v48, v49
    v_mov_b32 v49, v48
    s_nop 1
    v_permlane32_swap_b32 v48, v49
    s_nop 0
    v_max_f32 v48, v48, v49
    """)
    for k in range(8):
        a(f"v_sub_f32 v{T+k}, v{T+k}, v48")
    for k in range(8):
        a(f"v_mul_f32 v{T+k}, s67, v{T+k}")
    for k in range(8):
        a(f"v_exp_f32 v{T+k}, v{T+k}")
    a(f"""
    s_nop 0
    v_add_f32 v48, v{T}, v{T+1}
    v_add_f32 v49, v{T+2}, v{T+3}
    v_add_f32 v50, v{T+4}, v{T+5}
    v_add_f32 v51, v{T+6}, v{T+7}
    v_add_f32 v48, v48, v49
    v_add_f32 v50, v50, v51
    v_add_f32 v48, v48, v50
    v_mov_b32 v49, v48
    s_nop 1
    v_permlane16_swap_b32 v48, v49
    s_nop 0
    v_add_f32 v48, v48, v49
    v_mov_b32 v49, v48
    s_nop 1
    v_permlane32_swap_b32 v48, v49
    s_nop 0
    v_add_f32 v48, v48, v49
    v_rcp_f32 v48, v48
    s_nop 0
    """)
    for k in range(8): a(f"v_mul_f32 v{T+k}, v{T+k}, v48")
    for k in range(4): a(f"v_cvt_pk_bf16_f32 v{52+k}, v{T+2*k}, v{T+2*k+1}")
    for k in range(4): a(f"v_min_u32 v{52+k}, -2, v{52+k}")
    a(f"""
    buffer_store_dwordx4 v[52:55], v6, s[36:39], s66 offen sc1
    v_lshlrev_b32 v2, 4, v1
    """)
    stamp(4)
    a(f"""
    s_mov_b32 s61, {GSPIN}
    .Lpollp:
    s_sleep {opt.get('psleep', 2)}
    buffer_load_dword v248, v7, s[36:39], s65 offen sc1
    s_waitcnt vmcnt(0)
    v_cmp_eq_u32 vcc, -1, v248
    s_cbranch_vccz .Lgotp
    s_sub_u32 s61, s61, 1
    s_cbranch_scc0 .Lpollp
    .Lgotp:
    """)
    PF = 16
    for r in range(4):
        a(f"s_add_u32 s63, s65, {r*8*BOXSZ}")
        for t in range(2):
            a(f"buffer_load_dwordx4 {vr(PF+8*r+4*t,4)}, v2, s[36:39], s63 offen offset:{t*1024} sc1")
    a(f"""
    v_and_b32 v3, 0x33, v1
    v_bfe_u32 v5, v1, 2, 1              ; h'
    v_lshl_or_b32 v3, v5, 3, v3
    v_bfe_u32 v5, v1, 3, 1              ; a&1
    v_lshl_or_b32 v3, v5, 2, v3
    v_lshlrev_b32 v3, 4, v3
    s_lshl_b32 s63, s62, 11
    s_lshl_b32 s60, s46, 12
    s_add_u32 s63, s63, s60
    s_add_u32 s63, s63, {BR}
    v_add_u32 v3, s63, v3
    v_add_u32 v4, {2*20480}, v3
    s_lshl_b32 s60, s46, 2
    v_add_u32 v5, s60, v{vCnt}
    s_andn2_b32 s60, s2, 7
    s_lshl_b32 s68, s62, 2
    s_add_u32 s60, s60, s68
    s_mul_i32 s68, s60, {BOXSZ}
    s_lshl_b32 s60, s20, 9
    s_add_u32 s68, s68, s60
    s_lshl_b32 s60, s46, 12
    s_add_u32 s68, s68, s60
    s_add_u32 s68, s68, {BOX0 + 4096}
    v_bfe_u32 v6, v1, 3, 2
    v_mul_u32_u24 v6, {BOXSZ}, v6
    v_and_b32 v249, 7, v1
    v_lshl_add_u32 v6, v249, 4, v6
    v_lshrrev_b32 v249, 5, v1
    v_lshl_add_u32 v6, v249, 8, v6
    s_waitcnt vmcnt(0)
    """)
    a(f"v_max3_u32 v248, v{PF}, v{PF+1}, v{PF+2}")
    a(f"v_max3_u32 v249, v{PF+3}, v{PF+4}, v{PF+5}")
    for k in range(6, 30, 4):
        a(f"v_max3_u32 v248, v248, v{PF+k}, v{PF+k+1}")
        a(f"v_max3_u32 v249, v249, v{PF+k+2}, v{PF+k+3}")
    a(f"""v_max3_u32 v248, v248, v{PF+30}, v{PF+31}
    v_max_u32 v248, v248, v249
    v_cmp_eq_u32 vcc, -1, v248
    s_cbranch_vccz .Lpok
    s_sub_u32 s61, s61, 1
    s_cbranch_scc0 .Lgotp
    .Lpok:
    """)
    stamp(5)
    VF, OA = 64, 112
    for k in range(3):
        if k == 2:
            a("s_cmp_lg_u32 s46, 0\ns_cbranch_scc1 .Ladone")
        poll_lds(5, C5 + 8*k, 4, 248)
        for r in range(4):
            for t in range(2):
                a(f"ds_read_b128 {vr(VF+8*r+4*t,4)}, v{3 + r//2} offset:{(r%2)*20480 + k*8192 + t*1024}")
        o = OA + 16*k
        for j in range(8):
            a(f"s_waitcnt lgkmcnt({7-j})")
            cin = "0" if j == 0 else vr(o, 16)
            a(f"{MF} {vr(o,16)}, {vr(VF+4*j,4)}, {vr(PF+4*j,4)}, {cin}")
        a("s_nop 7\ns_nop 3")
        for j in range(8):
            a(f"v_cvt_pk_bf16_f32 v{o+j}, v{o+2*j}, v{o+2*j+1}")
        for j in range(8):
            a(f"v_min_u32 v{o+j}, -2, v{o+j}")
        a(f"s_add_u32 s63, s68, {k*8192}")
        a(f"buffer_store_dwordx4 {vr(o,4)}, v6, s[36:39], s63 offen sc1")
        a(f"buffer_store_dwordx4 {vr(o+4,4)}, v6, s[36:39], s63 offen offset:128 sc1")
    a(".Ladone:")
    stamp(6)
    if diag: a("s_waitcnt vmcnt(0)")
    stamp(7)
    a("s_branch .Lfin")

    a(".Lbwave:")
    vRd, vV, vWo, vTr, vCnt, vOne, vLn = 8, 12, 16, 21, 22, 23, 7
    WOF, VFR, ACC = 24, 64, 96
    vm = VM()
    a(f"""
    s_setprio {opt.get('prioB', 0)}
    s_sub_u32 s40, s23, 4               ; h'
    s_lshl_b32 s41, s20, 2
    s_add_u32 s41, s41, s40             ; head
    ; rotc = bp % 3 ; rots = 2*((bp/3)&1)
    s_mul_i32 s42, s21, 43
    s_lshr_b32 s42, s42, 7              ; bp/3
    s_mul_i32 s43, s42, 3
    s_sub_u32 s43, s21, s43             ; rotc
    s_and_b32 s42, s42, 1
    s_lshl_b32 s42, s42, 1              ; rots
    """)
    if opt.get('norot'): a("s_mov_b32 s42, 0\ns_mov_b32 s43, 0")
    for c in range(3):
        a(f"""s_add_u32 s60, s43, {c}
        s_sub_u32 s61, s60, 3
        s_cmp_ge_u32 s60, 3
        s_cselect_b32 s60, s61, s60
        s_lshl_b32 s{44+c}, s60, 7
        s_mul_i32 s{50+c}, s60, {64*1280}""")
    for s in range(4):
        a(f"s_xor_b32 s60, s42, {s}\ns_mul_i32 s{53+s}, s60, {16*1280}")
    a(f"""
    v_mul_u32_u24 v7, 384, v5
    v_add_u32 v{vV}, v7, v6
    v_xor_b32 v{vV+1}, 64, v{vV}
    v_add_u32 v{vV+2}, {2*3072-2048}, v{vV}
    v_add_u32 v{vV+3}, {3*3072-3072}, v{vV+1}
    v_add_u32 v{vV+1}, {3072-1024}, v{vV+1}
    s_lshl_b32 s57, s21, 6
    s_add_u32 s57, s57, s41
    s_mul_i32 s57, s57, 12288
    s_mul_i32 s58, s41, {192*1280}
    s_mul_i32 s60, s22, 320
    s_add_u32 s58, s58, s60
    s_mul_i32 s59, s40, 20480
    s_add_u32 s59, s59, {BR}
    """)
    for p in range(5):
        a(f"""v_add_u32 v2, {64*p}, v1
        v_mul_u32_u24 v3, 3277, v2
        v_lshrrev_b32 v3, 16, v3            ; row = q/20
        v_mul_u32_u24 v7, {1280-320}, v3
        v_lshl_add_u32 v{vWo+p}, v1, 4, v7""")
    a(f"""
    s_lshl_b32 s69, s21, 7
    s_waitcnt lgkmcnt(0)
    s_load_dword s69, s[18:19], s69
    s_add_u32 s24, s8, s57
    s_addc_u32 s25, s9, 0
    s_mov_b32 s26, {393216+12288}
    s_mov_b32 s27, 0x20000
    s_add_u32 s28, s12, s58
    s_addc_u32 s29, s13, 0
    s_mov_b32 s30, {191*1280+320}
    s_mov_b32 s31, 0x20000
    """)
    items = []
    for c in range(3):
        items += [('V', c, 0), ('V', c, 1)] + [('W', c, s) for s in range(4)]
    NI = len(items)
    def b_pieces(i):
        t, c, s = items[i]
        out = []
        n = 4 if t == 'V' else 5
        for p in range(n):
            setup = ""
            if p == 0:
                setup = f"s_add_u32 m0, s59, {(i%4)*5120}\n"
                setup += f"s_add_u32 s63, s{44+c}, {s*393216}\n" if t == 'V' else f"s_add_u32 s63, s{50+c}, s{53+s}\n"
            if p == 4:
                setup = f"s_add_u32 m0, s59, {(i%4)*5120+1024}\ns_add_u32 s63, s63, 1024\n"
            off = 1024*min(p, 3)
            if t == 'V':
                out.append((i, setup + f"buffer_load_dwordx4 v{vV+p}, s[24:27], s63 offen offset:{off} lds"))
            else:
                out.append((i, setup + f"buffer_load_dwordx4 v{vWo+p}, s[28:31], s63 offen offset:{off} lds"))
        return out
    def emit_piece(pc):
        a(pc[1]); vm.issue(pc[0])
    for i in range(4):
        for pc in b_pieces(i): emit_piece(pc)
    a(f"""
    s_mov_b32 s36, s18
    s_mov_b32 s37, s19
    s_mov_b32 s38, {WSN}
    s_mov_b32 s39, 0x20000
    s_mul_i32 s66, s2, {BOXSZ}
    s_add_u32 s66, s66, {BOX0}
    s_mul_i32 s60, s40, 7168
    s_add_u32 s60, s60, s66
    s_add_u32 s61, s60, 4096
    v_lshlrev_b32 v2, 4, v1
    v_mov_b32 v24, -1
    v_mov_b32 v25, -1
    v_mov_b32 v26, -1
    v_mov_b32 v27, -1
    """)
    for k in range(7):
        a(f"buffer_store_dwordx4 v[24:27], v2, s[36:39], s{60 + k//4} offen offset:{(k%4)*1024} sc1"); vm.issue('clr')
    a(f"""
    s_lshl_b32 s60, s2, 7
    s_lshl_b32 s61, s40, 2
    s_add_u32 s60, s60, s61
    s_add_u32 s67, s60, {FLG}
    s_lshl_b32 s60, s42, 5
    v_xor_b32 v4, s60, v4
    v_add_u32 v{vRd}, s59, v4
    v_xor_b32 v2, 32, v4
    v_add_u32 v{vRd+1}, s59, v2
    v_xor_b32 v2, 64, v4
    v_add_u32 v{vRd+2}, s59, v2
    v_xor_b32 v2, 96, v4
    v_add_u32 v{vRd+3}, s59, v2
    v_lshrrev_b32 v2, 5, v1
    v_bfe_u32 v3, v1, 2, 2
    v_lshl_add_u32 v2, v2, 3, v3
    v_mul_u32_u24 v2, 320, v2
    v_bfe_u32 v3, v1, 4, 1
    v_lshl_add_u32 v2, v3, 5, v2
    v_and_b32 v3, 3, v1
    v_lshl_add_u32 v2, v3, 3, v2
    v_add_u32 v{vTr}, s59, v2
    v_mov_b32 v{vCnt}, {CNT}
    v_mov_b32 v{vOne}, 1
    v_lshlrev_b32 v{vLn}, 4, v1
    v_add_u32 v{vLn}, s59, v{vLn}
    s_waitcnt lgkmcnt(0)
    s_add_u32 s69, s69, {EPK}
    v_mov_b32 v5, s69
    v_mov_b32 v6, 0
    s_barrier
    """)
    stamp(1)
    def vf(b, s): return VFR + (b*4 + s)*4
    def acc(n, b): return ACC + (n*2 + b)*16
    wo_buf = {}
    nb = 0
    for i, (t, c, s) in enumerate(items):
        if t == 'W': wo_buf[i] = WOF + 20*(nb % 2); nb += 1
    def b_read_v(i, ss):
        t, c, b = items[i]
        for s in ss:
            a(f"ds_read_b128 {vr(vf(b,s),4)}, v{vRd+s} offset:{(i%4)*5120}")
    def b_read_w(i):
        for n in range(5):
            for e in range(2):
                a(f"ds_read_b64_tr_b16 {vr(wo_buf[i]+4*n+2*e,2)}, v{vTr} offset:{(i%4)*5120 + n*64 + e*1280}")
    a(f"s_waitcnt vmcnt({vm.wait(0)})"); b_read_v(0, range(4))
    a(f"s_waitcnt vmcnt({vm.wait(1)})"); b_read_v(1, range(4))
    a(f"s_waitcnt vmcnt({vm.wait(2)})"); b_read_w(2)
    stamp(2)
    drop.update(opt.get('dropB', []))
    issued = 4
    for i, (t, c, s) in enumerate(items):
        if t != 'W': continue
        a("s_waitcnt lgkmcnt(0)")
        pcs = []
        while issued < NI and issued <= i + 4:
            pcs += b_pieces(issued); issued += 1
        last = (i == NI - 1)
        mfs = [(n, b) for n in range(5) for b in range(2)]
        def mf(n, b):
            cin = "0" if (c == 0 and s == 0) else vr(acc(n, b), 16)
            a(f"{MF} {vr(acc(n,b),16)}, {vr(vf(b,s),4)}, {vr(wo_buf[i]+4*n,4)}, {cin}")
        if not last:
            nfirst = 6
            per = -(-len(pcs) // nfirst) if pcs else 0
            for k in range(nfirst):
                mf(*mfs[k])
                for pc in pcs[k*per:(k+1)*per]: emit_piece(pc)
            if s < 3:
                a(f"s_waitcnt vmcnt({vm.wait(i+1)})"); b_read_w(i+1)
                if i + 1 == 4:
                    a("s_mov_b64 exec, 1\nbuffer_store_dword v5, v6, s[36:39], s67 offen sc1\ns_mov_b64 exec, -1"); vm.issue('flag')
            else:
                a(f"s_waitcnt vmcnt({vm.wait(i+2)})")
                b_read_v(i+1, range(3)); b_read_v(i+2, range(3))
                a(f"s_waitcnt vmcnt({vm.wait(i+3)})"); b_read_w(i+3)
            for k in range(nfirst, 10): mf(*mfs[k])
            if s == 3:
                b_read_v(i+1, [3]); b_read_v(i+2, [3])
        else:
            drop.clear()
            stamp(3)
            def fin(n):
                for b in range(2):
                    for t2 in range(2):
                        base = acc(n, b) + 8*t2
                        for k in range(4):
                            a(f"v_cvt_pk_bf16_f32 v{base+k}, v{base+2*k}, v{base+2*k+1}")
                        a(f"ds_write_b128 v{vLn}, {vr(base,4)} offset:{n*4096 + b*2048 + t2*1024}")
                a("s_waitcnt lgkmcnt(0)")
                lds_arrive(vCnt, C5 + 4*n, vOne)
            mf(0, 0); mf(0, 1); mf(1, 0); mf(1, 1)
            a("s_nop 7\ns_nop 1")
            for n in range(5):
                if n + 2 < 5:
                    mf(n+2, 0); mf(n+2, 1)
                fin(n)
    stamp(4)
    a(f"""
    v_lshlrev_b32 v2, 4, v1
    s_lshl_b32 s60, s40, 12
    s_add_u32 s64, s66, s60
    s_add_u32 s64, s64, 4096
    v_lshrrev_b32 v3, 1, v1
    v_xor_b32 v3, v3, v1
    v_and_b32 v4, 1, v1
    v_lshlrev_b32 v4, 4, v4
    v_mov_b32 v7, 0x3f80
    v_lshlrev_b32 v4, v4, v7
    v_and_b32 v3, 8, v3
    v_cmp_eq_u32 vcc, 0, v3
    v_cndmask_b32 v4, 0, v4, vcc
    v_bfe_u32 v3, v1, 1, 2
    v_cmp_eq_u32 vcc, 0, v3
    v_cndmask_b32 v8, 0, v4, vcc
    v_cmp_eq_u32 vcc, 1, v3
    v_cndmask_b32 v9, 0, v4, vcc
    v_cmp_eq_u32 vcc, 2, v3
    v_cndmask_b32 v10, 0, v4, vcc
    v_cmp_eq_u32 vcc, 3, v3
    v_cndmask_b32 v11, 0, v4, vcc
    v_and_b32 v3, 7, v1
    v_mul_u32_u24 v3, 1280, v3
    v_bfe_u32 v4, v1, 3, 1
    v_lshl_add_u32 v3, v4, 5, v3
    v_lshrrev_b32 v4, 4, v1
    v_lshl_add_u32 v3, v4, 3, v3
    s_mov_b32 s32, s14
    s_mov_b32 s33, s15
    s_mov_b32 s34, {512*1280}
    s_mov_b32 s35, 0x20000
    s_lshl_b32 s60, s21, 3
    s_add_u32 s60, s60, s20
    s_mul_i32 s65, s60, {8*1280}
    s_mul_i32 s60, s22, 320
    s_add_u32 s65, s65, s60
    s_lshl_b32 s60, s40, 6
    s_add_u32 s65, s65, s60
    .Lred:
    s_mov_b32 s61, {GSPIN}
    .Lrpoll:
    """)
    for m in range(4):
        a(f"buffer_load_dwordx4 {vr(24+4*m,4)}, v2, s[36:39], s64 offen offset:{m*1024} sc1")
    a(f"""
    s_waitcnt vmcnt(2)
    v_max3_u32 v12, v24, v25, v26
    v_max3_u32 v13, v27, v28, v29
    v_max3_u32 v12, v12, v30, v31
    s_waitcnt vmcnt(0)
    v_max3_u32 v13, v13, v32, v33
    v_max3_u32 v12, v12, v34, v35
    v_max3_u32 v13, v13, v36, v37
    v_max3_u32 v12, v12, v38, v39
    v_max_u32 v12, v12, v13
    v_cmp_eq_u32 vcc, -1, v12
    s_cbranch_vccz .Lrok
    s_sub_u32 s61, s61, 1
    s_cbranch_scc0 .Lrpoll
    .Lrok:
    v_mfma_f32_16x16x32_bf16 v[16:19], v[8:11], v[24:27], 0
    v_mfma_f32_16x16x32_bf16 v[16:19], v[8:11], v[28:31], v[16:19]
    v_mfma_f32_16x16x32_bf16 v[16:19], v[8:11], v[32:35], v[16:19]
    v_mfma_f32_16x16x32_bf16 v[16:19], v[8:11], v[36:39], v[16:19]
    s_nop 7
    s_nop 1
    v_cvt_pk_bf16_f32 v16, v16, v17
    v_cvt_pk_bf16_f32 v17, v18, v19
    buffer_store_dwordx2 v[16:17], v3, s[32:35], s65 offen
    s_cmp_lg_u32 s40, 0
    s_cbranch_scc1 .Lbdone
    s_mov_b32 s40, 4
    s_add_u32 s64, s64, 16384
    s_add_u32 s65, s65, 256
    s_branch .Lred
    .Lbdone:
    s_cmp_lg_u32 s40, 4
    s_cbranch_scc1 .Lnobump
    s_and_b32 s60, s2, 31
    s_cmp_lg_u32 s60, 0
    s_cbranch_scc1 .Lnobump
    s_lshl_b32 s60, s21, 7
    s_mov_b64 exec, 1
    buffer_store_dword v5, v6, s[36:39], s60 offen sc1
    s_mov_b64 exec, -1
    .Lnobump:
    """)
    stamp(5)
    if diag: a("s_waitcnt vmcnt(0)")
    stamp(6)
    a(".Lfin:")
    if diag:
        a(f"""
        s_waitcnt lgkmcnt(0)
        s_add_u32 s12, s18, {WSB-NREC*4}
        s_addc_u32 s13, s19, 0
        s_mov_b32 s14, {NREC*4}
        s_mov_b32 s15, 0x20000
        s_lshl_b32 s16, s2, 3
        s_add_u32 s16, s16, s23
        s_lshl_b32 s16, s16, 6
        v_mov_b32 v5, s16
        """)
        for i in range(16):
            a(f"v_mov_b32 v6, s{70+2*i}\nbuffer_store_dword v6, v5, s[12:15], 0 offen offset:{4*i}")
    a(".Lend:\ns_endpgm")
    return a.text()

HEADER = open("standalone__mha_block_cached__near_ridge.s.ref").read().split("; Override")[0]

KN = "standalone__mha_block_cached__near_ridge_kernel"
def make(path, diag=False, opt=None):
    ks = [dict(name=KN, body=gen_main(diag, opt), grid=256, block=512, lds=163840, vgpr=256, accum=256)]
    build(path, ks, HEADER, single=not (opt or {}).get('aslist'))

if __name__ == "__main__" and len(sys.argv) > 2:
    o = eval("dict(" + sys.argv[2] + ")")
    make(sys.argv[1] + ".s", diag=True, opt=o)
    assemble(sys.argv[1] + ".s", sys.argv[1] + ".co")
elif __name__ == "__main__":
    make("standalone__mha_block_cached__near_ridge.s")
    assemble("standalone__mha_block_cached__near_ridge.s", "k.co")
    make("kd.s", diag=True)
    assemble("kd.s", "kd.co")
```

```python
import sys
from asmlib import *
WSB = 268435456
NREC = 256*8*16
def gen(NW=4, D=3, run=128, stride=12288, reps=4, act=256, src=10, wgoff=384, woff=160*12288, rot=1, swz=0):
    a = Asm()
    a(f"""
    s_lshr_b32 s21, s2, 5
    s_cmp_ge_u32 s21, {act//32}
    s_cbranch_scc1 .Lend
    s_load_dwordx16 s[4:19], s[0:1], 0
    s_memrealtime s[70:71]
    v_readfirstlane_b32 s23, v0
    v_and_b32 v1, 63, v0
    s_and_b32 s20, s2, 7
    s_bfe_u32 s22, s2, 0x20003
    s_lshr_b32 s23, s23, 6
    s_lshl_b32 s41, s20, 2
    s_add_u32 s41, s41, s22
    s_mul_i32 s58, s41, {wgoff}
    s_mul_i32 s60, s23, {woff}
    s_add_u32 s58, s58, s60
    """)
    cpr = run // 16
    import math
    per = cpr // math.gcd(cpr, 64)
    rows_per = 64*per // cpr
    for p in range(per):
        a(f"""v_add_u32 v2, {64*p}, v1
        v_mul_u32_u24 v3, {math.ceil(65536/cpr)}, v2
        v_lshrrev_b32 v3, 16, v3
        v_mul_u32_u24 v4, {cpr}, v3
        v_sub_u32 v4, v2, v4""")
        if swz: a("v_and_b32 v5, 7, v3\nv_xor_b32 v4, v4, v5")
        a(f"""v_lshlrev_b32 v4, 4, v4
        s_mov_b32 s60, {stride}
        v_mul_lo_u32 v3, v3, s60
        v_add_u32 v{10+p}, v3, v4""")
    a(f"""
    s_waitcnt lgkmcnt(0)
    s_add_u32 s28, s{src}, s58
    s_addc_u32 s29, s{src+1}, 0
    s_mov_b32 s30, {6144*1280}
    s_sub_u32 s30, s30, s58
    s_mov_b32 s31, 0x20000
    s_lshl_b32 s59, s23, 14
    s_mul_i32 s56, s21, {6 if rot else 0}
    """)
    NP = 48
    nrows = 48*1024 // run
    rmax = 128 if stride > 2000 else 192
    def soff(i):
        r0 = (i // per) * rows_per
        return (r0 % rmax)*stride + (r0 // rmax)*run
    for g in range(8):
        a(f"s_mov_b32 s{40+g}, 0")
        for r in range(8):
            a(f"s_cmp_eq_u32 s56, {6*r}\ns_cselect_b32 s{40+g}, {soff(6*((g+r)%8))}, s{40+g}")
    N = reps*NP
    def issue(i):
        j = i % NP; g = j // 6
        a(f"s_add_u32 m0, s59, {(i % 16)*1024}\ns_add_u32 s63, s{40+g}, {soff(j) - soff(6*g)}")
        a(f"buffer_load_dwordx4 v{10 + j % per}, s[28:31], s63 offen lds")
    a("s_barrier")
    for i in range(N):
        if i % NP == 0:
            k = i // NP
            a(f"s_memrealtime s[{72+4*k}:{73+4*k}]\ns_memtime s[{74+4*k}:{75+4*k}]")
        issue(i)
        if i % 4 == 3: a(f"s_waitcnt vmcnt({4*(D-1)})")
    a("s_waitcnt vmcnt(0)")
    k = reps
    a(f"s_memrealtime s[{72+4*k}:{73+4*k}]\ns_memtime s[{74+4*k}:{75+4*k}]")
    a(f"""
    s_waitcnt lgkmcnt(0)
    s_add_u32 s12, s18, {WSB-NREC*4}
    s_addc_u32 s13, s19, 0
    s_mov_b32 s14, {NREC*4}
    s_mov_b32 s15, 0x20000
    s_lshl_b32 s16, s2, 3
    s_add_u32 s16, s16, s23
    s_lshl_b32 s16, s16, 6
    v_mov_b32 v5, s16
    """)
    for i in range(14):
        a(f"v_mov_b32 v6, s{70+2*i}\nbuffer_store_dword v6, v5, s[12:15], 0 offen offset:{4*i}")
    a(".Lend:\ns_endpgm")
    return a.text()
HEADER = open("standalone__mha_block_cached__near_ridge.s.ref").read().split("; Override")[0]
KN = "standalone__mha_block_cached__near_ridge_kernel"
o = eval("dict(" + sys.argv[2] + ")")
NW = o.get('NW', 4)
build(sys.argv[1] + ".s", [dict(name=KN, body=gen(**o), grid=256, block=64*NW, lds=163840, vgpr=128, accum=128)], HEADER, single=True)
assemble(sys.argv[1] + ".s", sys.argv[1] + ".co")
```

```python
import sys
from asmlib import *
WSB = 268435456
NREC = 256*8*16
def gen(D=8, rotA=1, rotX=1, rotB=1, mf=1, rd=1, order=0, kpos=9, il=0, ins=None, s4=32):
    a = Asm()
    def modn(s, n):
        a(f"s_sub_u32 s62, s{s}, {n}\ns_cmp_ge_u32 s{s}, {n}\ns_cselect_b32 s{s}, s62, s{s}")
    a(f"""
    s_cmp_ge_u32 s2, 256
    s_cbranch_scc1 .Lend
    s_load_dwordx16 s[4:19], s[0:1], 0
    s_memrealtime s[70:71]
    v_readfirstlane_b32 s23, v0
    v_and_b32 v1, 63, v0
    s_and_b32 s20, s2, 7
    s_lshr_b32 s21, s2, 5
    s_bfe_u32 s22, s2, 0x20003
    s_lshr_b32 s23, s23, 6
    v_lshrrev_b32 v5, 3, v1
    v_and_b32 v2, 7, v1
    v_lshlrev_b32 v2, 4, v2
    v_mul_u32_u24 v10, 1280, v5
    v_mul_u32_u24 v11, 12288, v5
    v_mul_u32_u24 v12, 384, v5
    v_add_u32 v10, v10, v2
    v_add_u32 v11, v11, v2
    v_add_u32 v12, v12, v2
    v_lshlrev_b32 v13, 4, v1
    s_mul_i32 s49, s21, 43
    s_lshr_b32 s49, s49, 7
    s_mul_i32 s48, s49, 3
    s_sub_u32 s48, s21, s48
    s_mul_i32 s47, s22, 5
    s_add_u32 s47, s47, 1
    s_lshr_b32 s47, s47, 1
    """)
    a("s_mov_b32 s68, s48\ns_mov_b32 s69, s49")
    if not rotA: a("s_mov_b32 s48, 0\ns_mov_b32 s49, 0")
    if rotA == 2: a("s_mov_b32 s49, 0")
    if not rotX: a("s_mov_b32 s47, 0")
    if not rotB: a("s_mov_b32 s68, 0\ns_mov_b32 s69, 0")
    a(f"""
    s_lshl_b32 s46, s49, 2
    s_add_u32 s46, s46, s47
    s_lshl_b32 s40, s20, 2
    s_add_u32 s40, s40, s22             ; A head
    """)
    modn(46, 10)
    a("s_add_u32 s43, s46, s23"); modn(43, 10)
    a("s_add_u32 s44, s43, 4"); modn(44, 10)
    a("s_lshr_b32 s42, s23, 1\ns_add_u32 s45, s46, s42\ns_add_u32 s45, s45, 8"); modn(45, 10)
    a(f"""
    s_mul_i32 s50, s43, 786432
    s_add_u32 s51, s50, 393216
    s_mul_i32 s52, s44, 786432
    s_add_u32 s53, s52, 393216
    s_and_b32 s60, s23, 1
    s_mul_i32 s61, s60, 40960
    s_lshl_b32 s3, s45, 7
    s_add_u32 s3, s3, s61
    s_lshl_b32 s45, s45, 1
    s_add_u32 s45, s45, s60
    s_mul_i32 s54, s45, 393216
    s_lshl_b32 s55, s48, 7
    s_add_u32 s56, s55, 128
    """)
    modn(56, 384)
    a("s_add_u32 s57, s56, 128"); modn(57, 384)
    a(f"""
    s_lshl_b32 s43, s43, 7
    s_lshl_b32 s44, s44, 7
    s_mul_i32 s28, s21, 81920
    s_mul_i32 s24, s40, 384
    s_lshl_b32 s60, s21, 6
    s_add_u32 s60, s60, s40
    s_mul_i32 s36, s60, 12288
    s_mul_i32 s60, s23, 3072
    s_add_u32 s36, s36, s60
    s_xor_b32 s41, s23, s22
    s_lshl_b32 s60, s20, 2
    s_add_u32 s41, s41, s60             ; B head
    s_lshl_b32 s60, s21, 6
    s_add_u32 s60, s60, s41
    s_mul_i32 s32, s60, 12288
    s_and_b32 s42, s22, 1
    s_lshr_b32 s61, s22, 1
    s_mul_i32 s60, s41, {192*1280}
    s_mul_i32 s64, s61, 640
    s_add_u32 s64, s64, s60
    s_mul_i32 s47, s42, 384
    s_and_b32 s60, s69, 1
    s_lshl_b32 s60, s60, 7
    s_sub_u32 s48, s47, s60
    s_add_u32 s48, s48, 128
    s_add_u32 s47, s47, s60
    {"s_mov_b32 s61, 0" if not rotB else ""}
    s_add_u32 s60, s68, s61
    s_lshl_b32 s60, s60, 1
    s_mul_i32 s61, s42, 5
    s_add_u32 s60, s60, s61
    s_lshl_b32 s61, s42, 2
    s_add_u32 s61, s61, 1
    s_mul_i32 s59, s23, {4096*D}
    v_add_u32 v13, s59, v13
    s_mov_b32 s26, {639*12288+384}
    s_mov_b32 s27, 0x20000
    s_mov_b32 s30, 81920
    s_mov_b32 s31, 0x20000
    s_mov_b32 s34, {393216+12288}
    s_mov_b32 s35, 0x20000
    s_mov_b32 s38, {393216+3072}
    s_mov_b32 s39, 0x20000
    s_mov_b32 s66, {191*1280+640}
    s_mov_b32 s67, 0x20000
    s_waitcnt lgkmcnt(0)
    s_add_u32 s28, s4, s28
    s_addc_u32 s29, s5, 0
    s_add_u32 s24, s10, s24
    s_addc_u32 s25, s11, 0
    s_add_u32 s36, s6, s36
    s_addc_u32 s37, s7, 0
    s_add_u32 s32, s8, s32
    s_addc_u32 s33, s9, 0
    s_add_u32 s64, s12, s64
    s_addc_u32 s65, s13, 0
    s_memrealtime s[72:73]
    """)
    st = [('X',0,0),('W',0,0),('X',0,1),('W',0,1),('X',1,0),('X',1,1),('W',0,2),('W',0,3),('H',0,0),('W',0,4)]
    st += [('W',p,u) for p in (1, 2) for u in range(5)]
    cold = [('K',0,0),('K',1,0),('V',0,0),('V',0,1),('O',0,0),('O',0,1)]
    ins = ins or [kpos, kpos+1, 22, 23, 24, 25]
    for pos, it in zip(ins, cold): st.insert(pos, it)
    st += [('V',1,0),('V',1,1),('O',0,2),('O',0,3),('V',2,0),('V',2,1),('O',0,4),('O',0,5)]
    st += [('O',1,j) for j in range(6)] + [('O',2,j) for j in range(3)]
    N = len(st)
    cnt = [3 if t == 'K' else 4 for t, _, _ in st]
    def issue(i, gap=None):
        t, p, u = st[i]
        if i == 4:
            modn(60, 6)
            for j in range(6):
                if j: a("s_add_u32 s60, s60, s61")
                modn(60, 6)
                a(f"s_mul_i32 s{4+j}, s60, 40960")
                if j % 2 == 0: a(f"s_lshr_b32 s{10+j//2}, s60, 1\ns_lshl_b32 s{10+j//2}, s{10+j//2}, 7")
        a(f"s_add_u32 m0, s59, {(i % D)*4096}")
        for q in range(cnt[i]):
            if q and gap: gap()
            if q == 0:
                if t == 'W': a(f"s_add_u32 s63, s{50+u}, s{55+p}")
                if t == 'X': a(f"s_add_u32 s63, s{43+p}, {u*40960}")
                if t == 'H': a(f"s_mov_b32 s63, s3")
                if t == 'K': a(f"s_mov_b32 s63, {p*393216}")
                if t == 'V': a(f"s_add_u32 s63, s{10+p}, {u*393216}")
                if t == 'O': a(f"s_add_u32 s63, s{4+u}, {'s47' if p == 0 else 's48' if p == 1 else '256'}")
            else:
                inc = dict(W=98304, X=10240, H=10240, K=128+1024, V=3072, O=10240)[t] - 1024
                a(f"s_add_u32 s63, s63, {inc}")
                if t == 'K': a("s_add_u32 m0, m0, 1024\ns_nop 0")
            v, s = dict(W=(11,24), X=(10,28), H=(10,28), K=(12,36), V=(12,32), O=(10,64))[t]
            a(f"buffer_load_dwordx4 v{v}, s[{s}:{s+3}], s63 offen offset:{0 if t == 'K' else 1024*q} lds")
    for i in range(D): issue(i)
    stamps = {0:2, 1:3, 3:4, 7:5, 11:6, 16:7, 21:8, 25:9, 29:10, 33:11, 39:12, N-1:13}
    for i in range(N):
        hi = min(N, i + D)
        a(f"s_waitcnt vmcnt({sum(cnt[i+1:hi])})")
        if i in stamps: a(f"s_memrealtime s[{70+2*stamps[i]}:{71+2*stamps[i]}]")
        if rd:
            for q in range(4): a(f"ds_read_b128 v[{32+4*q}:{35+4*q}], v13 offset:{(i%D)*4096+1024*q}")
        t = st[i][0]
        nm = 16 if t in 'WO' else 0
        if t == 'W' and st[i][2] == 4: nm = s4
        left = [nm if mf else 0]
        def mfs(n):
            for _ in range(min(n, left[0])):
                q = left[0]; left[0] -= 1
                a(f"v_mfma_f32_16x16x32_bf16 v[{64+4*(q%16)}:{67+4*(q%16)}], v[20:23], v[24:27], v[{64+4*(q%16)}:{67+4*(q%16)}]")
        mfs(4 if il else 99)
        if rd: a("s_waitcnt lgkmcnt(0)")
        if i + D < N: issue(i + D, lambda: mfs(3))
        mfs(99)
    a(f"""
    s_waitcnt lgkmcnt(0)
    s_add_u32 s12, s18, {WSB-NREC*4}
    s_addc_u32 s13, s19, 0
    s_mov_b32 s14, {NREC*4}
    s_mov_b32 s15, 0x20000
    s_lshl_b32 s16, s2, 3
    s_add_u32 s16, s16, s23
    s_lshl_b32 s16, s16, 6
    v_mov_b32 v5, s16
    """)
    for i in range(14):
        a(f"v_mov_b32 v6, s{70+2*i}\nbuffer_store_dword v6, v5, s[12:15], 0 offen offset:{4*i}")
    a(".Lend:\ns_endpgm")
    return a.text()
HEADER = open("standalone__mha_block_cached__near_ridge.s.ref").read().split("; Override")[0]
KN = "standalone__mha_block_cached__near_ridge_kernel"
o = eval("dict(" + sys.argv[2] + ")")
build(sys.argv[1] + ".s", [dict(name=KN, body=gen(**o), grid=256, block=256, lds=163840, vgpr=256, accum=256)], HEADER, single=True)
assemble(sys.argv[1] + ".s", sys.argv[1] + ".co")
```
